```python
import torch

def _softmax(x, axis=-1):
    return torch.softmax(x, dim=axis)
def _gelu(x):
    return torch.nn.functional.gelu(x, approximate="tanh")
def _silu(x):
    return torch.nn.functional.silu(x)
def _sigmoid(x):
    return torch.sigmoid(x)
def _layernorm(x, axis=-1, eps=1e-5):
    m = x.mean(dim=axis, keepdim=True)
    v = x.var(dim=axis, keepdim=True, unbiased=False)
    return (x - m) / torch.sqrt(v + eps)
def _scatter_add(tgt, idx, src, axis=0):
    return tgt.clone().index_add_(axis, idx, src)
def _segment_sum(src, seg, n):
    out = torch.zeros((n,) + src.shape[1:], dtype=src.dtype)
    return out.index_add_(0, seg, src)
def _pad(x, pw):
    flat = tuple(v for pair in reversed(pw) for v in pair)
    return torch.nn.functional.pad(x, flat)

kernel_name = 'standalone__gqa_softmax__near_ridge'

def setup_inputs():

    _w = (lambda a: (lambda t: t.to(torch.bfloat16) if t.is_floating_point() else t)(torch.as_tensor(a)))
    B, Hq, Hkv, Sq, Sk, D = 8, 32, 32, 512, 1024, 128
    return {
        "q": _w((lambda *s: torch.randn(*s, dtype=torch.bfloat16) * 0.8)(B, Hq, Sq, D)),
        "k": _w((lambda *s: torch.randn(*s, dtype=torch.bfloat16) * 0.8)(B, Hkv, Sk, D)),
        "v": _w((lambda *s: torch.randn(*s, dtype=torch.bfloat16) * 0.05)(B, Hkv, Sk, D)),
    }

def reference(q, k, v):
    B, Hq, Sq, D = q.shape
    Hkv = k.shape[1]
    rep = Hq // Hkv
    k = (lambda x, n, axis: torch.repeat_interleave(x, n, dim=axis))(k, rep, axis=1)
    v = (lambda x, n, axis: torch.repeat_interleave(x, n, dim=axis))(v, rep, axis=1)
    scale = D ** -0.5
    scores = torch.einsum("bhqd,bhkd->bhqk", q, k) * scale
    p = _softmax(scores, axis=-1)
    return torch.einsum("bhqk,bhkd->bhqd", p, v)
```

```python
NAME = "standalone__gqa_softmax__near_ridge"
HEADER = """; Kernarg layout for this problem (48 bytes, ptrs only, base s[0:1]):
; @launch grid=({grid},1,1) block=({block},1,1) lds={lds}
.amdgcn_target "amdgcn-amd-amdhsa--gfx950"
.text
.globl standalone__gqa_softmax__near_ridge_kernel
.p2align 8
.type standalone__gqa_softmax__near_ridge_kernel,@function
standalone__gqa_softmax__near_ridge_kernel:
"""
FOOTER = """.section .rodata,"a"
.p2align 6
.amdhsa_kernel standalone__gqa_softmax__near_ridge_kernel
  .amdhsa_next_free_vgpr {nvgpr}
  .amdhsa_next_free_sgpr 102
  .amdhsa_accum_offset {accoff}
  .amdhsa_group_segment_fixed_size 0
  .amdhsa_kernarg_size 48
  .amdhsa_user_sgpr_count 2
  .amdhsa_user_sgpr_kernarg_segment_ptr 1
  .amdhsa_system_sgpr_workgroup_id_x 1
.end_amdhsa_kernel
"""
class Asm:
    def __init__(self):
        self.lines = []
    def __call__(self, s):
        for l in s.split("\n"):
            l = l.strip()
            if l:
                self.lines.append(("" if l.endswith(":") or l.startswith(".") else "    ") + l)
    def text(self, grid, block, lds, nvgpr=512, accoff=256):
        return HEADER.format(grid=grid, block=block, lds=lds) + "\n".join(self.lines) + "\n" + FOOTER.format(nvgpr=nvgpr, accoff=accoff)
def vr(b, n=1, f="v"):
    return f"{f}{b}" if n == 1 else f"{f}[{b}:{b+n-1}]"
def ar(b, n=1):
    return vr(b, n, "a")
def sr(b, n=1):
    return vr(b, n, "s")
```

```python
import re

TRANS = ("v_exp_f32", "v_log_f32", "v_rcp_f32", "v_rsq_f32", "v_sqrt_f32", "v_sin_f32", "v_cos_f32")

def expand(tok):
    tok = tok.strip()
    tok = tok.strip("|")
    if tok.startswith("-"):
        tok = tok[1:].strip("|")
    m = re.fullmatch(r"([vas])\[(\d+):(\d+)\]", tok)
    if m:
        return [f"{m.group(1)}{i}" for i in range(int(m.group(2)), int(m.group(3)) + 1)]
    m = re.fullmatch(r"([vas])(\d+)", tok)
    if m:
        return [tok]
    if tok in ("vcc", "m0", "exec"):
        return [tok]
    return []

class I:
    __slots__ = ("text", "op", "kind", "r", "w", "cr", "tok_w", "tok_r", "tag", "wide")
    def __init__(self, text, tok_w=None, tok_r=None, tag=None):
        self.text = text
        self.tok_w = tok_w
        self.tok_r = tok_r or []
        self.tag = tag
        self.cr = []
        self.wide = False
        t = text.split(";")[0].strip()
        if t.endswith(":") or t.startswith(".") or t == "":
            self.op = ""; self.kind = "label"; self.r = []; self.w = []
            return
        parts = t.split(None, 1)
        op = parts[0]; self.op = op
        rest = parts[1] if len(parts) > 1 else ""
        ops = [x.strip() for x in rest.split(",")]
        ops2 = []
        for x in ops:
            ops2.append(x.split()[0] if x else x)
        regs = [expand(x) for x in ops2]
        flat = lambda l: [y for x in l for y in x]
        r = []; w = []
        if op.startswith("v_mfma"):
            k = "mfma"; w = regs[0]; r = regs[1] + regs[2]; self.cr = regs[3]
        elif op.startswith("v_permlane") and "swap" in op:
            k = "perm"; w = flat(regs); r = flat(regs)
        elif op.startswith("v_cmp"):
            k = "valu"; w = regs[0]; r = flat(regs[1:])
        elif op.startswith("v_readfirstlane") or op.startswith("v_readlane"):
            k = "rdlane"; w = regs[0]; r = flat(regs[1:])
        elif op.startswith("v_"):
            k = "trans" if op.replace("_e32", "").replace("_e64", "") in TRANS else "valu"
            w = regs[0]; r = flat(regs[1:])
            if op.startswith("v_nop"):
                w = []; r = []
        elif op.startswith("ds_read"):
            k = "dsr"; w = regs[0]; r = flat(regs[1:])
        elif op.startswith("ds_write"):
            k = "dsw"; r = flat(regs)
        elif op.startswith("buffer_load"):
            if t.split()[-1] == "lds" or " lds " in t + " ":
                k = "dma"; r = flat(regs) + ["m0"]
            else:
                k = "vld"; w = regs[0]; r = flat(regs[1:])
        elif op.startswith("buffer_store") or op.startswith("buffer_atomic"):
            k = "vst"; r = flat(regs); self.wide = ("x4" in op or "x3" in op)
            self.cr = regs[0]
        elif op == "s_waitcnt":
            k = "wait"
        elif op == "s_barrier":
            k = "barrier"
        elif op == "s_nop":
            k = "nop"
        elif op.startswith("s_cbranch") or op == "s_branch" or op == "s_endpgm":
            k = "branch"
        elif op.startswith("s_load") or op.startswith("s_mem"):
            k = "smem"; w = regs[0]; r = flat(regs[1:])
        elif op.startswith("s_cmp"):
            k = "salu"; r = flat(regs)
        elif op.startswith("s_"):
            k = "salu"; w = regs[0]; r = flat(regs[1:])
        else:
            raise ValueError(text)
        self.kind = k; self.r = r; self.w = w
    def isvalu(self):
        return self.kind in ("valu", "trans", "perm", "rdlane")
    def isvec_mem(self):
        return self.kind in ("dsr", "dsw", "dma", "vld", "vst")
    def states(self):
        if self.kind == "label": return 0
        if self.kind == "nop": return int(self.text.split()[1]) + 1
        return 1

def parse_wait(text):
    vm = re.search(r"vmcnt\((\d+)\)", text); lg = re.search(r"lgkmcnt\((\d+)\)", text)
    return (int(vm.group(1)) if vm else None, int(lg.group(1)) if lg else None)

def insert_waits(S, hoist=True, verbose=False):
    out = []
    pend = {}
    cnt = {"lg": 0, "vm": 0}
    done = {"lg": 0, "vm": 0}
    pos_cnt = []
    def push(x):
        pos_cnt.append((cnt["lg"], cnt["vm"]))
        out.append(x)
    LIM = {"lg": 15, "vm": 63}
    NAME = {"lg": "lgkmcnt", "vm": "vmcnt"}
    for x in S:
        need = {"lg": -1, "vm": -1}
        for reg in list(x.r) + list(x.w) + list(x.cr) + list(x.tok_r):
            if reg in pend:
                c, sq = pend[reg]
                if sq >= done[c]:
                    need[c] = max(need[c], sq)
        for c in ("lg", "vm"):
            if need[c] < 0: continue
            sq = need[c]
            ci = 0 if c == "lg" else 1
            p = len(out)
            if hoist and x.kind == "mfma":
                j = len(out); back = 0
                while j > 0 and back < 3:
                    if out[j-1].kind == "mfma":
                        back += 1
                        cj = pos_cnt[j][ci] if j < len(out) else cnt[c]
                        if cj <= sq: break
                        nxt = out[j] if j < len(out) else None
                        if nxt is None or not nxt.isvec_mem():
                            p = j; break
                    if out[j-1].kind in ("label", "branch", "barrier"): break
                    j -= 1
            cp = pos_cnt[p][ci] if p < len(out) else cnt[c]
            n = min(cp - sq - 1, LIM[c])
            assert n >= 0
            wi = I(f"s_waitcnt {NAME[c]}({n})")
            pc = pos_cnt[p] if p < len(out) else (cnt["lg"], cnt["vm"])
            out.insert(p, wi); pos_cnt.insert(p, pc)
            done[c] = max(done[c], cp - n)
        if x.kind == "wait":
            vm, lg = parse_wait(x.text)
            if vm is not None: done["vm"] = max(done["vm"], cnt["vm"] - vm)
            if lg is not None: done["lg"] = max(done["lg"], cnt["lg"] - lg)
        push(x)
        if x.kind in ("dsr", "dsw"):
            for reg in x.w: pend[reg] = ("lg", cnt["lg"])
            if x.tok_w: pend[x.tok_w] = ("lg", cnt["lg"])
            cnt["lg"] += 1
        elif x.kind in ("vld", "dma", "vst"):
            for reg in x.w: pend[reg] = ("vm", cnt["vm"])
            if x.tok_w: pend[x.tok_w] = ("vm", cnt["vm"])
            cnt["vm"] += 1
        assert x.kind != "smem" or x.tag == "smem_ok", "smem in auto-wait stream: " + x.text
    return out

def required(prod, cons):
    req = 0
    pw = set(prod.w)
    cr = set(cons.r); cw = set(cons.w); cc = set(cons.cr)
    if prod.kind == "mfma":
        if cons.kind == "mfma":
            if pw & cr: req = max(req, 8)
            if pw & cc and list(prod.w) != list(cons.cr): req = max(req, 6)
            if pw & cw and not (pw & cc): req = max(req, 4)
        elif cons.isvalu() or cons.isvec_mem():
            if pw & (cr | cw | cc): req = max(req, 8)
            if cons.isvalu() and set(prod.cr) & cw: req = max(req, 3)
            if cons.kind in ("dsr", "vld") and set(prod.cr) & cw: req = max(req, 3)
    if prod.isvalu():
        vw = {x for x in pw if x[0] in "va" and x != "vcc"}
        sw = {x for x in pw if x[0] == "s" or x == "vcc"}
        if cons.kind == "mfma" and vw & (cr | cc): req = max(req, 2)
        if cons.kind == "perm" and vw & cr: req = max(req, 2)
        if cons.kind == "rdlane" and vw & cr: req = max(req, 1)
        if prod.kind == "trans" and cons.isvalu() and cons.kind != "trans" and vw & cr: req = max(req, 1)
        if cons.isvalu() and sw & cr: req = max(req, 2)
        if cons.isvec_mem() and sw & cr: req = max(req, 5)
        if cons.kind == "salu" and sw & cr: req = max(req, 2)
        if "dpp" in cons.text and vw & cr: req = max(req, 2)
        if "exec" in pw and cons.kind == "mfma": req = max(req, 4)
    if prod.kind == "salu" and "m0" in pw and cons.kind == "dma": req = max(req, 1)
    if prod.kind == "vst" and prod.wide and set(prod.cr) & cw:
        req = max(req, 2)
    return req

def pad_hazards(S, report=None):
    out = []
    for x in S:
        if x.kind not in ("label", "nop", "wait", "barrier", "branch"):
            need = 0; dist = 0
            for p in reversed(out):
                if dist >= 8: break
                rq = required(p, x)
                if rq - dist > need:
                    need = rq - dist
                dist += p.states()
            if need > 0:
                if report is not None: report.append((len(out), need, x.text))
                out.append(I(f"s_nop {need-1}"))
        out.append(x)
    return out
```

```python
import sys, struct, math
from common import *
from ir import *

MF = "v_mfma_f32_16x16x32_bf16"
R = 6
SLOT = 8448
KV_OFF = R * SLOT
SLOW_OFF = 2 * KV_OFF
LDS_BYTES = SLOW_OFF + 4 * SLOT
NT = 32
f2u = lambda x: struct.unpack("<I", struct.pack("<f", x))[0]
CSCALE = f2u(math.log2(math.e) / math.sqrt(128.0))
L_LO = f2u(2.0 ** -16); L_HI = f2u(2.0 ** 64)

vKrd, vVrd, vKdma, vVdma = 0, 1, 2, 3
vL = 4
vP = 12
vS = 20
vF = 36
vQ = 128
def quad(k): return vF + 4 * k
def q4(b): return f"v[{b}:{b+3}]"
def Kreg(t, k):
    if k in (1, 5, 6, 7): return quad({1: 0, 5: 1, 6: 2, 7: 3}[k])
    if k == 4: return quad(21 + t % 2)
    return quad(6 + 3 * (t % 3) + {0: 0, 2: 1, 3: 2}[k])
def Vreg(t, j):
    if j in (1, 7): return quad({1: 4, 7: 5}[j])
    if j in (4, 5, 6): return quad(6 + 3 * ((t - 1) % 3) + (j - 4))
    return quad(15 + 3 * (t % 2) + {0: 0, 2: 1, 3: 2}[j])
sQ, sK, sV, sO = 4, 8, 12, 16
sOff, sM0, sCnt, sC, sTmp = 20, 21, 22, 23, 24
sBad = 26
sW = 3
sWS = 32
sST = 40

def srd(b): return f"s[{b}:{b+3}]"

def gen(opt):
    nt_mod = " nt" if opt.get("nt") else ""
    ntq_mod = " nt" if opt.get("ntq") else ""
    nto_mod = " nt" if opt.get("nto") else ""
    stamps = opt.get("stamps", 0)
    nst = [0]
    S = []
    def E(text, **kw):
        for l in text.split("\n"):
            l = l.strip()
            if l: S.append(I(l, **kw))
    def stamp():
        if not stamps: return
        k = nst[0]; nst[0] += 1
        S.append(I(f"s_memtime s[{sST+2*k}:{sST+2*k+1}]", tag="smem_ok"))
        S.append(I("s_waitcnt lgkmcnt(0)"))

    def dsK(t, k):
        T, s = k >> 2, k & 3
        return I(f"ds_read_b128 {q4(Kreg(t,k))}, v{vKrd} offset:{(t%R)*SLOT + T*512 + s*64}")
    def dsV(t, j, hf):
        b = Vreg(t, j) + 2 * hf
        return I(f"ds_read_b64_tr_b16 v[{b}:{b+1}], v{vVrd} offset:{(t%R)*SLOT + hf*512 + j*32}")
    def dma(t, k):
        base = (t % R) * SLOT + (KV_OFF if k >= 2 else 0) + [0, 2176, 0, 3200][k]
        off = ["", " offset:2048", "", " offset:1024"][k]
        m = I(f"s_add_u32 m0, s{sM0}, {base}")
        ld = I(f"buffer_load_dwordx4 v{vKdma if k < 2 else vVdma}, {srd(sK if k < 2 else sV)}, s{sOff} offen{off}{nt_mod} lds",
               tok_w=f"tile{t}{'K' if k < 2 else 'V'}")
        return m, ld

    pre = Asm()
    pre(f"""
    s_cmp_ge_u32 s2, 256
    s_cbranch_scc1 L_end
    s_load_dwordx4 s[4:7], s[0:1], 0
    s_load_dwordx4 s[12:15], s[0:1], 16
    """)
    if stamps:
        pre(f"s_load_dwordx2 s[{sWS}:{sWS+1}], s[0:1], 40")
        pre(f"s_memtime s[{sST}:{sST+1}]"); nst[0] = 1
    pre(f"""
    v_lshrrev_b32 v12, 6, v0
    v_and_b32 v13, 63, v0
    v_readfirstlane_b32 s{sW}, v12
    v_and_b32 v14, 15, v13
    v_lshrrev_b32 v15, 4, v13
    s_lshl_b32 s28, s2, 17
    s_lshl_b32 s29, s2, 18
    s_mov_b32 s{sC}, {hex(CSCALE)}
    s_mul_i32 s{sM0}, s{sW}, 1056
    s_mov_b32 s{sOff}, 0
    s_mov_b64 s[{sBad}:{sBad+1}], 0
    v_lshrrev_b32 v16, 1, v15
    v_lshlrev_b32 v16, 4, v16
    v_and_b32 v17, 1, v15
    v_lshlrev_b32 v17, 2, v17
    v_add3_u32 v16, v16, v17, v12
    v_lshlrev_b32 v16, 8, v16
    v_lshl_add_u32 v{vKdma}, v14, 4, v16
    v_lshl_add_u32 v16, v15, 3, v12
    v_lshlrev_b32 v16, 8, v16
    v_lshl_add_u32 v{vVdma}, v14, 4, v16
    v_lshl_add_u32 v16, v12, 7, v14
    v_lshlrev_b32 v16, 8, v16
    v_lshl_add_u32 v4, v15, 4, v16
    s_waitcnt lgkmcnt(0)
    s_add_u32 s8, s6, s29
    s_addc_u32 s9, s7, 0
    s_mov_b32 s10, 262144
    s_mov_b32 s11, 0x00020000
    s_add_u32 s16, s14, s28
    s_addc_u32 s17, s15, 0
    s_mov_b32 s18, 131072
    s_mov_b32 s19, 0x00020000
    s_add_u32 s12, s12, s29
    s_addc_u32 s13, s13, 0
    s_mov_b32 s14, 262144
    s_mov_b32 s15, 0x00020000
    s_add_u32 s4, s4, s28
    s_addc_u32 s5, s5, 0
    s_mov_b32 s6, 131072
    s_mov_b32 s7, 0x00020000
    """)
    if stamps:
        pre(f"""
        s_mov_b32 s{sWS+2}, 268435456
        s_mov_b32 s{sWS+3}, 0x00020000
        """)
    def tile_dma(t):
        for k in range(4):
            m, ld = dma(t, k)
            S.append(m); S.append(ld)
        E(f"s_add_u32 s{sOff}, s{sOff}, 8192")
    tile_dma(0)
    for i in range(8):
        E(f"s_mov_b32 s{sTmp}, {i*4096}")
        for s in range(4):
            E(f"buffer_load_dwordx4 {q4(vQ+16*i+4*s)}, v4, {srd(sQ)}, s{sTmp} offen offset:{s*64}{ntq_mod}")
    for t in range(1, R - 1):
        tile_dma(t)
    E(f"""
    v_and_b32 v16, 3, v14
    v_lshrrev_b32 v17, 3, v14
    v_lshl_add_u32 v16, v17, 2, v16
    v_mul_u32_u24 v16, 1056, v16
    v_lshrrev_b32 v17, 2, v14
    v_and_b32 v17, 1, v17
    v_lshl_add_u32 v16, v17, 8, v16
    v_lshl_add_u32 v{vKrd}, v15, 4, v16
    v_and_b32 v16, 1, v15
    v_lshrrev_b32 v17, 2, v14
    v_lshl_add_u32 v16, v16, 2, v17
    v_mul_u32_u24 v16, 1056, v16
    v_lshrrev_b32 v17, 1, v15
    v_lshl_add_u32 v16, v17, 8, v16
    v_and_b32 v17, 3, v14
    v_lshl_add_u32 v16, v17, 3, v16
    v_add_u32 v{vVrd}, {KV_OFF}, v16
    """)

    NU = NT * 8
    first = -8; last = NU + 1
    mf = {}
    head = {}
    mem = {}
    val = {}
    pre_slot = {}
    def put(d, G, x): d.setdefault(G, []).append(x)
    for n in range(NU):
        i, t = n % 8, n // 8
        b = n & 1
        for k in range(8):
            T, s = k >> 2, k & 3
            D = q4(vS + 8 * b + 4 * T)
            mf[16 * (n - 1) + k] = I(f"{MF} {D}, {q4(Kreg(t,k))}, {q4(vQ+16*i+4*s)}, {'0' if s == 0 else D}")
        for j in range(8):
            A = f"a[{32*i+4*j}:{32*i+4*j+3}]"
            mf[16 * (n + 1) + 8 + j] = I(f"{MF} {A}, {q4(Vreg(t,j))}, {q4(vP+4*b)}, {'0' if t == 0 else A}")
        for e in range(8):
            x = vS + 8 * b + e
            put(val, 16 * n + 2 * e, I(f"v_exp_f32 v{x}, v{x}"))
            if t == 0 and e == 0:
                put(val, 16 * n + 2 * e + 3, I(f"v_mov_b32 v{vL+i}, v{x}"))
            else:
                put(val, 16 * n + 2 * e + 3, I(f"v_add_f32 v{vL+i}, v{vL+i}, v{x}"))
        for k in range(4):
            x = vS + 8 * b + 2 * k
            put(val, 16 * n + 4 * k + 7, I(f"v_cvt_pk_bf16_f32 v{vP+4*b+k}, v{x}, v{x+1}"))
    for t in range(-1, NT):
        g0 = lambda sl, g: 16 * (8 * t + sl) + g
        if t >= 0:
            put(mem, g0(0, 1), dsV(t, 6, 0)); put(mem, g0(0, 5), dsV(t, 6, 1))
            put(mem, g0(0, 9), dsV(t, 1, 0)); put(mem, g0(0, 13), dsV(t, 1, 1))
            put(mem, g0(1, 1), dsV(t, 7, 0)); put(mem, g0(1, 5), dsV(t, 7, 1))
        if t < NT - 1:
            u = t + 1
            put(head, g0(2, 0), I("s_barrier", tok_r=[f"tile{u}K", f"tile{u}V"]))
            put(mem, g0(2, 1), dsK(u, 0)); put(mem, g0(2, 9), dsK(u, 2)); put(mem, g0(3, 9), dsK(u, 3)); put(mem, g0(4, 9), dsK(u, 4))
            put(mem, g0(2, 13), dsV(u, 0, 0)); put(mem, g0(3, 1), dsV(u, 0, 1))
            put(mem, g0(3, 13), dsV(u, 2, 0)); put(mem, g0(4, 1), dsV(u, 2, 1))
            put(mem, g0(4, 13), dsV(u, 3, 0)); put(mem, g0(5, 1), dsV(u, 3, 1))
            for k in range(4):
                m, ld = dma(t + R, k)
                put(head, g0(2 + k, 4), m); put(mem, g0(2 + k, 5), ld)
            put(head, g0(5, 6), I(f"s_add_u32 s{sOff}, s{sOff}, 8192"))
            put(mem, g0(6, 1), dsK(u, 1)); put(mem, g0(6, 5), dsK(u, 5)); put(mem, g0(6, 9), dsK(u, 6)); put(mem, g0(6, 13), dsK(u, 7))
            put(mem, g0(7, 1), dsV(u, 4, 0)); put(mem, g0(7, 5), dsV(u, 4, 1))
            put(mem, g0(7, 9), dsV(u, 5, 0)); put(mem, g0(7, 13), dsV(u, 5, 1))
    for i in range(8):
        blk = []
        for r in range(16):
            x = vQ + 16 * i + r
            tt = vL + 6 + (r & 1)
            blk += [f"v_lshlrev_b32 v{tt}, 16, v{x}", f"v_and_b32 v{x}, 0xffff0000, v{x}",
                    f"v_mul_f32 v{tt}, s{sC}, v{tt}", f"v_mul_f32 v{x}, s{sC}, v{x}",
                    f"v_cvt_pk_bf16_f32 v{x}, v{tt}, v{x}"]
        pre_slot[i - 1] = [I(z) for z in blk]
    LOOP0, PERIOD, NITER = 1, 6, 5
    for n in range(first, last + 1):
        for x in pre_slot.get(n, []): S.append(x)
        for g in range(16):
            G = 16 * n + g
            if G in mf: S.append(mf[G])
            if g == 10 and n % 8 == 1 and (n // 8 - LOOP0) % PERIOD == 0 and 0 <= (n // 8 - LOOP0) // PERIOD <= NITER:
                S.append(I("; LOOPPOINT", tag="loop"))
            for d in (head, mem, val):
                for x in d.get(G, []): S.append(x)
            if n == -6 and g == 0: stamp()
        if n == 8: stamp()
    stamp()

    tA, tB = vS, vS + 1
    vZ0 = vP
    vZ = vP + 4
    vO = 0
    E(f"""
    v_mbcnt_lo_u32_b32 v{vS+2}, -1, 0
    v_mbcnt_hi_u32_b32 v{vS+2}, -1, v{vS+2}
    v_and_b32 v{vS+3}, 15, v{vS+2}
    v_lshrrev_b32 v{vS+2}, 4, v{vS+2}
    s_lshl_b32 s28, s{sW}, 7
    v_add_u32 v{vS+3}, s28, v{vS+3}
    v_lshlrev_b32 v{vS+3}, 8, v{vS+3}
    v_and_b32 v{vS+4}, 1, v{vS+2}
    v_lshl_add_u32 v{vS+3}, v{vS+4}, 5, v{vS+3}
    v_lshrrev_b32 v{vS+2}, 1, v{vS+2}
    v_lshl_add_u32 v{vO}, v{vS+2}, 4, v{vS+3}
    s_mov_b32 s28, {hex(L_LO)}
    s_mov_b32 s29, {hex(L_HI - L_LO)}
    """)
    def reduce_g(x, tmp, op):
        E(f"""
        v_mov_b32 v{tmp}, v{x}
        v_permlane32_swap_b32 v{tmp}, v{x}
        {op} v{x}, v{x}, v{tmp}
        v_mov_b32 v{tmp}, v{x}
        v_permlane16_swap_b32 v{tmp}, v{x}
        {op} v{x}, v{x}, v{tmp}
        """)
    for st in range(6):
        for i in range(8):
            x, tmp = vL + i, vS + 8 + i
            E([f"v_mov_b32 v{tmp}, v{x}", f"v_permlane32_swap_b32 v{tmp}, v{x}", f"v_add_f32 v{x}, v{x}, v{tmp}",
               f"v_mov_b32 v{tmp}, v{x}", f"v_permlane16_swap_b32 v{tmp}, v{x}", f"v_add_f32 v{x}, v{x}, v{tmp}"][st])
    for i in range(8):
        x, tmp = vL + i, vS + 8 + i
        E(f"""
        v_subrev_u32 v{tmp}, s28, v{x}
        v_cmp_le_u32 vcc, s29, v{tmp}
        v_rcp_f32 v{x}, v{x}
        s_or_b64 s[{sBad}:{sBad+1}], s[{sBad}:{sBad+1}], vcc
        """)
    for r in range(4): E(f"v_mov_b32 v{vZ0+r}, 0")
    def out_tile(i, src, rinv, check, cnt0, sreg):
        for jj in range(4):
            c = cnt0 + jj
            tb = quad(2 * (c % 4))
            ob = quad(8 + c % 8)
            for z in range(8):
                E(src(2 * jj + z // 4, z % 4, tb + z))
            pr = rinv & ~1
            sel = "op_sel_hi:[1,0]" if rinv % 2 == 0 else "op_sel:[0,1] op_sel_hi:[1,1]"
            for z in range(4):
                E(f"v_pk_mul_f32 v[{tb+2*z}:{tb+2*z+1}], v[{tb+2*z}:{tb+2*z+1}], v[{pr}:{pr+1}] {sel}")
            for z in range(4):
                E(f"v_cvt_pk_bf16_f32 v{ob+z}, v{tb+2*z}, v{tb+2*z+1}")
            E(f"v_permlane16_swap_b32 v{ob}, v{ob+2}")
            E(f"v_permlane16_swap_b32 v{ob+1}, v{ob+3}")
            E(f"buffer_store_dwordx4 {q4(ob)}, v{vO}, {srd(sO)}, s{sreg} offen offset:{jj*64}{nto_mod}")
            if check:
                E(f"{MF} {q4(vZ)}, {q4(vZ0)}, {q4(ob)}, {'0' if c == 0 else q4(vZ)}")
    for i in range(8):
        E(f"s_mov_b32 s{sTmp}, {i*4096}")
        out_tile(i, lambda j, r, d: f"v_accvgpr_read_b32 v{d}, a{32*i+4*j+r}", vL + i, True, 4 * i, sTmp)
    E(f"""
    v_cmp_u_f32 vcc, v{vZ}, v{vZ}
    s_or_b64 s[{sBad}:{sBad+1}], s[{sBad}:{sBad+1}], vcc
    """)
    stamp()
    if stamps:
        E("s_waitcnt vmcnt(0)")
        stamp()
        E(f"s_lshl_b32 s28, s2, 2\ns_add_u32 s28, s28, s{sW}\ns_mul_i32 s28, s28, {8*nst[0]}\nv_mov_b32 v{vS}, 0")
        for k in range(nst[0]):
            E(f"v_mov_b32 v{vS+2}, s{sST+2*k}\nv_mov_b32 v{vS+3}, s{sST+2*k+1}\ns_nop 4")
            E(f"buffer_store_dwordx2 v[{vS+2}:{vS+3}], v{vS}, {srd(sWS)}, s28 offen offset:{8*k}")
            E("s_waitcnt vmcnt(0)")
    if opt.get("force_slow"):
        E(f"s_mov_b64 s[{sBad}:{sBad+1}], -1")
    E(f"""
    s_cmp_eq_u64 s[{sBad}:{sBad+1}], 0
    s_cbranch_scc1 L_end
    """)
    main = pad_hazards(insert_waits(S))

    idx = [k for k, x in enumerate(main) if x.tag == "loop"]
    assert len(idx) == NITER + 1
    segs = [[x.text for x in main[idx[k] + 1: idx[k + 1]]] for k in range(NITER)]
    for k in range(1, NITER):
        assert segs[k] == segs[0], f"loop body {k} differs"
    a = pre
    for x in main[:idx[0]]: a(x.text)
    a(f"s_mov_b32 s{sCnt}, {NITER-1}")
    if opt.get("align"): a(f".p2align {opt['align']}")
    a("L_loop:")
    for x in segs[0]: a(x)
    a(f"s_sub_u32 s{sCnt}, s{sCnt}, 1")
    a("s_cbranch_scc0 L_loop")
    for x in main[idx[-1] + 1:]: a(x.text)

    S = []
    vKd, vKd2, vM, vLs, vVd, vVr = 1, 2, 4, 6, 3, 5
    vQs = 128; vKs = 144; vVs = 176; vOs = 208
    sI, sT, sM = 28, 29, 30
    E(f"""
    s_waitcnt vmcnt(0) lgkmcnt(0)
    v_mbcnt_lo_u32_b32 v12, -1, 0
    v_mbcnt_hi_u32_b32 v12, -1, v12
    v_and_b32 v14, 15, v12
    v_lshrrev_b32 v15, 4, v12
    v_lshlrev_b32 v16, 8, v14
    v_lshl_add_u32 v{vKd}, v15, 4, v16
    v_add_u32 v{vKd2}, 4096, v{vKd}
    v_lshlrev_b32 v16, 11, v15
    v_lshl_add_u32 v{vVd}, v14, 4, v16
    s_mul_i32 s{sM}, s{sW}, {SLOT}
    s_add_u32 s{sM}, s{sM}, {SLOW_OFF}
    v_and_b32 v16, 1, v15
    v_lshrrev_b32 v17, 2, v14
    v_lshl_add_u32 v16, v16, 2, v17
    v_mul_u32_u24 v16, 1056, v16
    v_lshrrev_b32 v17, 1, v15
    v_lshl_add_u32 v16, v17, 8, v16
    v_and_b32 v17, 3, v14
    v_lshl_add_u32 v16, v17, 3, v16
    v_add_u32 v{vVr}, s{sM}, v16
    s_mov_b32 s{sI}, 0
    L_sq:
    s_lshl_b32 s{sTmp}, s{sW}, 15
    s_add_u32 s{sTmp}, s{sTmp}, s{sI}
    """)
    for s in range(4):
        E(f"buffer_load_dwordx4 {q4(vQs+4*s)}, v{vKd}, {srd(sQ)}, s{sTmp} offen offset:{s*64}")
    def slow_qk():
        for k in range(8):
            E(f"buffer_load_dwordx4 {q4(vKs+4*k)}, v{vKd if k < 4 else vKd2}, {srd(sK)}, s{sT} offen offset:{(k&3)*64}")
        E("s_waitcnt vmcnt(0)")
        for k in range(8):
            D = q4(vS + 4 * (k >> 2))
            E(f"{MF} {D}, {q4(vKs+4*k)}, {q4(vQs+4*(k&3))}, {'0' if k & 3 == 0 else D}")
    E(f"""
    v_mov_b32 v{vM}, 0xff800000
    s_mov_b32 s{sT}, 0
    L_sp1:
    """)
    slow_qk()
    for e in range(0, 8, 2):
        E(f"v_max3_f32 v{vM}, v{vM}, v{vS+e}, v{vS+e+1}")
    E(f"""
    s_add_u32 s{sT}, s{sT}, 8192
    s_cmp_lt_u32 s{sT}, 262144
    s_cbranch_scc1 L_sp1
    """)
    reduce_g(vM, vS, "v_max_f32")
    E(f"v_mov_b32 v{vLs}, 0")
    for r in range(32): E(f"v_mov_b32 v{vOs+r}, 0")
    E(f"""
    s_mov_b32 s{sT}, 0
    L_sp2:
    """)
    for b in range(8):
        E(f"s_add_u32 m0, s{sM}, {b*800}")
        E(f"buffer_load_dwordx4 v{vVd}, {srd(sV)}, s{sT} offen offset:{b*256} lds")
    slow_qk()
    for j in range(8):
        for hf in range(2):
            E(f"ds_read_b64_tr_b16 v[{vVs+4*j+2*hf}:{vVs+4*j+2*hf+1}], v{vVr} offset:{hf*512+j*32}")
    for e in range(8): E(f"v_sub_f32 v{vS+e}, v{vS+e}, v{vM}")
    for e in range(8): E(f"v_mul_f32 v{vS+e}, s{sC}, v{vS+e}")
    for e in range(8): E(f"v_exp_f32 v{vS+e}, v{vS+e}")
    for e in range(8): E(f"v_add_f32 v{vLs}, v{vLs}, v{vS+e}")
    for k in range(4): E(f"v_cvt_pk_bf16_f32 v{vP+k}, v{vS+2*k}, v{vS+2*k+1}")
    E("s_waitcnt lgkmcnt(0)")
    for j in range(8):
        D = q4(vOs + 4 * j)
        E(f"{MF} {D}, {q4(vVs+4*j)}, {q4(vP)}, {D}")
    E(f"""
    s_nop 7
    s_add_u32 s{sT}, s{sT}, 8192
    s_cmp_lt_u32 s{sT}, 262144
    s_cbranch_scc1 L_sp2
    """)
    reduce_g(vLs, vS, "v_add_f32")
    E(f"v_rcp_f32 v{vLs}, v{vLs}")
    out_tile(0, lambda j, r, d: f"v_mov_b32 v{d}, v{vOs+4*j+r}", vLs, False, 0, sI)
    E(f"""
    s_nop 7
    s_add_u32 s{sI}, s{sI}, 4096
    s_cmp_lt_u32 s{sI}, 32768
    s_cbranch_scc1 L_sq
    """)
    for x in pad_hazards(insert_waits(S, hoist=False)): a(x.text)
    a("L_end:\ns_waitcnt vmcnt(0)\ns_endpgm")
    return a.text(256, 256, LDS_BYTES)

if __name__ == "__main__":
    out = sys.argv[1]
    opt = {}
    for kv in sys.argv[2:]:
        k, v = kv.split("=")
        opt[k] = int(v)
    open(out, "w").write(gen(opt))
```

```python
import sys, struct, math
from common import *
from ir import *

MF = "v_mfma_f32_16x16x32_bf16"
R = 6
SLOT = 8448
KV_OFF = R * SLOT
SLOW_OFF = 2 * KV_OFF
LDS_BYTES = SLOW_OFF + 4 * SLOT
NT = 32
f2u = lambda x: struct.unpack("<I", struct.pack("<f", x))[0]
CSCALE = f2u(math.log2(math.e) / math.sqrt(128.0))
L_LO = f2u(2.0 ** -16); L_HI = f2u(2.0 ** 64)

vKrd, vVrd, vKdma, vVdma = 0, 1, 2, 3
vL = 4
vP = 12
vS = 20
vF = 36
vQ = 128
def quad(k): return vF + 4 * k
def q4(b): return f"v[{b}:{b+3}]"
def Kreg(t, k):
    if k in (1, 5, 6, 7): return quad({1: 0, 5: 1, 6: 2, 7: 3}[k])
    if k == 4: return quad(21 + t % 2)
    return quad(6 + 3 * (t % 3) + {0: 0, 2: 1, 3: 2}[k])
def Vreg(t, j):
    if j in (1, 7): return quad({1: 4, 7: 5}[j])
    if j in (4, 5, 6): return quad(6 + 3 * ((t - 1) % 3) + (j - 4))
    return quad(15 + 3 * (t % 2) + {0: 0, 2: 1, 3: 2}[j])
sQ, sK, sV, sO = 4, 8, 12, 16
sOff, sM0, sCnt, sC, sTmp = 20, 21, 22, 23, 24
sBad = 26
sW = 3
sWS = 32
sST = 40

def srd(b): return f"s[{b}:{b+3}]"

def gen(opt):
    cm = lambda k: "".join(m for b, m in ((1, " sc0"), (2, " sc1"), (4, " nt")) if opt.get(k, 0) & b)
    nt_mod = cm("nt"); ntq_mod = cm("ntq"); nto_mod = cm("nto")
    stamps = opt.get("stamps", 0)
    nst = [0]
    TIMEOP = "s_memtime" if stamps == 1 else "s_memrealtime"
    S = []
    def E(text, **kw):
        for l in text.split("\n"):
            l = l.strip()
            if l: S.append(I(l, **kw))
    def stamp():
        if not stamps: return
        k = nst[0]; nst[0] += 1
        S.append(I(f"{TIMEOP} s[{sST+2*k}:{sST+2*k+1}]", tag="smem_ok"))
        S.append(I("s_waitcnt lgkmcnt(0)"))

    def dsK(t, k):
        T, s = k >> 2, k & 3
        return I(f"ds_read_b128 {q4(Kreg(t,k))}, v{vKrd} offset:{(t%R)*SLOT + T*512 + s*64}")
    def dsV(t, j, hf):
        b = Vreg(t, j) + 2 * hf
        return I(f"ds_read_b64_tr_b16 v[{b}:{b+1}], v{vVrd} offset:{(t%R)*SLOT + hf*512 + j*32}")
    def dma(t, k):
        base = (t % R) * SLOT + (KV_OFF if k >= 2 else 0) + [0, 2176, 0, 3200][k]
        off = ["", " offset:2048", "", " offset:1024"][k]
        m = I(f"s_add_u32 m0, s{sM0}, {base}")
        ld = I(f"buffer_load_dwordx4 v{vKdma if k < 2 else vVdma}, {srd(sK if k < 2 else sV)}, s{sOff} offen{off}{nt_mod} lds",
               tok_w=f"tile{t}{'K' if k < 2 else 'V'}")
        return m, ld

    pre = Asm()
    pre(f"""
    s_cmp_ge_u32 s2, 256
    s_cbranch_scc1 L_end
    s_load_dwordx4 s[4:7], s[0:1], 0
    s_load_dwordx4 s[12:15], s[0:1], 16
    """)
    if stamps:
        pre(f"s_load_dwordx2 s[{sWS}:{sWS+1}], s[0:1], {32 if stamps == 2 else 40}")
        pre(f"{TIMEOP} s[{sST}:{sST+1}]"); nst[0] = 1
    pre(f"""
    v_lshrrev_b32 v12, 6, v0
    v_and_b32 v13, 63, v0
    v_readfirstlane_b32 s{sW}, v12
    v_and_b32 v14, 15, v13
    v_lshrrev_b32 v15, 4, v13
    s_lshl_b32 s28, s2, 17
    s_lshl_b32 s29, s2, 18
    s_mov_b32 s{sC}, {hex(CSCALE)}
    s_mul_i32 s{sM0}, s{sW}, 1056
    s_mov_b32 s{sOff}, 0
    s_mov_b64 s[{sBad}:{sBad+1}], 0
    v_lshrrev_b32 v16, 1, v15
    v_lshlrev_b32 v16, 4, v16
    v_and_b32 v17, 1, v15
    v_lshlrev_b32 v17, 2, v17
    v_add3_u32 v16, v16, v17, v12
    v_lshlrev_b32 v16, 8, v16
    v_lshl_add_u32 v{vKdma}, v14, 4, v16
    v_lshl_add_u32 v16, v15, 3, v12
    v_lshlrev_b32 v16, 8, v16
    v_lshl_add_u32 v{vVdma}, v14, 4, v16
    v_lshl_add_u32 v16, v12, 7, v14
    v_lshlrev_b32 v16, 8, v16
    v_lshl_add_u32 v4, v15, 4, v16
    s_waitcnt lgkmcnt(0)
    s_add_u32 s8, s6, s29
    s_addc_u32 s9, s7, 0
    s_mov_b32 s10, 262144
    s_mov_b32 s11, 0x00020000
    s_add_u32 s16, s14, s28
    s_addc_u32 s17, s15, 0
    s_mov_b32 s18, 131072
    s_mov_b32 s19, 0x00020000
    s_add_u32 s12, s12, s29
    s_addc_u32 s13, s13, 0
    s_mov_b32 s14, 262144
    s_mov_b32 s15, 0x00020000
    s_add_u32 s4, s4, s28
    s_addc_u32 s5, s5, 0
    s_mov_b32 s6, 131072
    s_mov_b32 s7, 0x00020000
    """)
    if stamps:
        pre(f"""
        s_mov_b32 s{sWS+2}, {256 if stamps == 2 else 268435456}
        s_mov_b32 s{sWS+3}, 0x00020000
        """)
    if opt.get("twice"):
        pre(f"s_mov_b32 s31, 1\nv_mov_b32 v5, v4\nv_accvgpr_write_b32 a0, v4\nL_again:")
    def tile_dma(t):
        for k in range(4):
            m, ld = dma(t, k)
            S.append(m); S.append(ld)
        E(f"s_add_u32 s{sOff}, s{sOff}, 8192")
    tile_dma(0)
    for i in range(8):
        E(f"s_mov_b32 s{sTmp}, {i*4096}")
        for s in range(4):
            E(f"buffer_load_dwordx4 {q4(vQ+16*i+4*s)}, v4, {srd(sQ)}, s{sTmp} offen offset:{s*64}{ntq_mod}")
    for t in range(1, R - 1):
        tile_dma(t)
    E(f"""
    v_and_b32 v16, 3, v14
    v_lshrrev_b32 v17, 3, v14
    v_lshl_add_u32 v16, v17, 2, v16
    v_mul_u32_u24 v16, 1056, v16
    v_lshrrev_b32 v17, 2, v14
    v_and_b32 v17, 1, v17
    v_lshl_add_u32 v16, v17, 8, v16
    v_lshl_add_u32 v{vKrd}, v15, 4, v16
    v_and_b32 v16, 1, v15
    v_lshrrev_b32 v17, 2, v14
    v_lshl_add_u32 v16, v16, 2, v17
    v_mul_u32_u24 v16, 1056, v16
    v_lshrrev_b32 v17, 1, v15
    v_lshl_add_u32 v16, v17, 8, v16
    v_and_b32 v17, 3, v14
    v_lshl_add_u32 v16, v17, 3, v16
    v_add_u32 v{vVrd}, {KV_OFF}, v16
    """)

    NU = NT * 8
    first = -8; last = NU + 1
    mf = {}
    head = {}
    mem = {}
    val = {}
    pre_slot = {}
    def put(d, G, x): d.setdefault(G, []).append(x)
    for n in range(NU):
        i, t = n % 8, n // 8
        b = n & 1
        for k in range(8):
            T, s = k >> 2, k & 3
            D = q4(vS + 8 * b + 4 * T)
            mf[16 * (n - 1) + k] = I(f"{MF} {D}, {q4(Kreg(t,k))}, {q4(vQ+16*i+4*s)}, {'0' if s == 0 else D}")
        for j in range(8):
            A = f"a[{32*i+4*j}:{32*i+4*j+3}]"
            mf[16 * (n + 1) + 8 + j] = I(f"{MF} {A}, {q4(Vreg(t,j))}, {q4(vP+4*b)}, {'0' if t == 0 else A}")
        for e in range(8):
            x = vS + 8 * b + e
            put(val, 16 * n + 2 * e, I(f"v_exp_f32 v{x}, v{x}"))
            if t == 0 and e == 0:
                put(val, 16 * n + 2 * e + 3, I(f"v_mov_b32 v{vL+i}, v{x}"))
            else:
                put(val, 16 * n + 2 * e + 3, I(f"v_add_f32 v{vL+i}, v{vL+i}, v{x}"))
        for k in range(4):
            x = vS + 8 * b + 2 * k
            put(val, 16 * n + 4 * k + 7, I(f"v_cvt_pk_bf16_f32 v{vP+4*b+k}, v{x}, v{x+1}"))
    for t in range(-1, NT):
        g0 = lambda sl, g: 16 * (8 * t + sl) + g
        if t >= 0:
            put(mem, g0(0, 1), dsV(t, 6, 0)); put(mem, g0(0, 5), dsV(t, 6, 1))
            put(mem, g0(0, 9), dsV(t, 1, 0)); put(mem, g0(0, 13), dsV(t, 1, 1))
            put(mem, g0(1, 1), dsV(t, 7, 0)); put(mem, g0(1, 5), dsV(t, 7, 1))
        if t < NT - 1:
            u = t + 1
            put(head, g0(2, 0), I("s_barrier", tok_r=[f"tile{u}K", f"tile{u}V"]))
            put(mem, g0(2, 1), dsK(u, 0)); put(mem, g0(2, 9), dsK(u, 2)); put(mem, g0(3, 9), dsK(u, 3)); put(mem, g0(4, 9), dsK(u, 4))
            put(mem, g0(2, 13), dsV(u, 0, 0)); put(mem, g0(3, 1), dsV(u, 0, 1))
            put(mem, g0(3, 13), dsV(u, 2, 0)); put(mem, g0(4, 1), dsV(u, 2, 1))
            put(mem, g0(4, 13), dsV(u, 3, 0)); put(mem, g0(5, 1), dsV(u, 3, 1))
            for k in range(4):
                m, ld = dma(t + R, k)
                put(head, g0(2 + k, 4), m); put(mem, g0(2 + k, 5), ld)
            put(head, g0(5, 6), I(f"s_add_u32 s{sOff}, s{sOff}, 8192"))
            put(mem, g0(6, 1), dsK(u, 1)); put(mem, g0(6, 5), dsK(u, 5)); put(mem, g0(6, 9), dsK(u, 6)); put(mem, g0(6, 13), dsK(u, 7))
            put(mem, g0(7, 1), dsV(u, 4, 0)); put(mem, g0(7, 5), dsV(u, 4, 1))
            put(mem, g0(7, 9), dsV(u, 5, 0)); put(mem, g0(7, 13), dsV(u, 5, 1))
    for i in range(8):
        blk = []
        for r in range(16):
            x = vQ + 16 * i + r
            tt = vL + 6 + (r & 1)
            blk += [f"v_lshlrev_b32 v{tt}, 16, v{x}", f"v_and_b32 v{x}, 0xffff0000, v{x}",
                    f"v_mul_f32 v{tt}, s{sC}, v{tt}", f"v_mul_f32 v{x}, s{sC}, v{x}",
                    f"v_cvt_pk_bf16_f32 v{x}, v{tt}, v{x}"]
        pre_slot[i - 1] = [I(z) for z in blk]
    LOOP0, PERIOD, NITER = 1, 6, 5
    for n in range(first, last + 1):
        for x in pre_slot.get(n, []): S.append(x)
        for g in range(16):
            G = 16 * n + g
            if G in mf: S.append(mf[G])
            if g == 10 and n % 8 == 1 and (n // 8 - LOOP0) % PERIOD == 0 and 0 <= (n // 8 - LOOP0) // PERIOD <= NITER:
                S.append(I("; LOOPPOINT", tag="loop"))
            for d in (head, mem, val):
                for x in d.get(G, []): S.append(x)
            if n == -6 and g == 0: stamp()
        if n == 8: stamp()
    stamp()

    tA, tB = vS, vS + 1
    vZ0 = vP
    vZ = vP + 4
    vO = 0
    E(f"""
    v_mbcnt_lo_u32_b32 v{vS+2}, -1, 0
    v_mbcnt_hi_u32_b32 v{vS+2}, -1, v{vS+2}
    v_and_b32 v{vS+3}, 15, v{vS+2}
    v_lshrrev_b32 v{vS+2}, 4, v{vS+2}
    s_lshl_b32 s28, s{sW}, 7
    v_add_u32 v{vS+3}, s28, v{vS+3}
    v_lshlrev_b32 v{vS+3}, 8, v{vS+3}
    v_and_b32 v{vS+4}, 1, v{vS+2}
    v_lshl_add_u32 v{vS+3}, v{vS+4}, 5, v{vS+3}
    v_lshrrev_b32 v{vS+2}, 1, v{vS+2}
    v_lshl_add_u32 v{vO}, v{vS+2}, 4, v{vS+3}
    s_mov_b32 s28, {hex(L_LO)}
    s_mov_b32 s29, {hex(L_HI - L_LO)}
    """)
    def reduce_g(x, tmp, op):
        E(f"""
        v_mov_b32 v{tmp}, v{x}
        v_permlane32_swap_b32 v{tmp}, v{x}
        {op} v{x}, v{x}, v{tmp}
        v_mov_b32 v{tmp}, v{x}
        v_permlane16_swap_b32 v{tmp}, v{x}
        {op} v{x}, v{x}, v{tmp}
        """)
    for st in range(6):
        for i in range(8):
            x, tmp = vL + i, vS + 8 + i
            E([f"v_mov_b32 v{tmp}, v{x}", f"v_permlane32_swap_b32 v{tmp}, v{x}", f"v_add_f32 v{x}, v{x}, v{tmp}",
               f"v_mov_b32 v{tmp}, v{x}", f"v_permlane16_swap_b32 v{tmp}, v{x}", f"v_add_f32 v{x}, v{x}, v{tmp}"][st])
    for i in range(8):
        x, tmp = vL + i, vS + 8 + i
        E(f"""
        v_subrev_u32 v{tmp}, s28, v{x}
        v_cmp_le_u32 vcc, s29, v{tmp}
        v_rcp_f32 v{x}, v{x}
        s_or_b64 s[{sBad}:{sBad+1}], s[{sBad}:{sBad+1}], vcc
        """)
    for r in range(4): E(f"v_mov_b32 v{vZ0+r}, 0")
    def out_tile(i, src, rinv, check, cnt0, sreg):
        for jj in range(4):
            c = cnt0 + jj
            tb = quad(2 * (c % 4))
            ob = quad(8 + c % 8)
            for z in range(8):
                E(src(2 * jj + z // 4, z % 4, tb + z))
            pr = rinv & ~1
            sel = "op_sel_hi:[1,0]" if rinv % 2 == 0 else "op_sel:[0,1] op_sel_hi:[1,1]"
            for z in range(4):
                E(f"v_pk_mul_f32 v[{tb+2*z}:{tb+2*z+1}], v[{tb+2*z}:{tb+2*z+1}], v[{pr}:{pr+1}] {sel}")
            for z in range(4):
                E(f"v_cvt_pk_bf16_f32 v{ob+z}, v{tb+2*z}, v{tb+2*z+1}")
            E(f"v_permlane16_swap_b32 v{ob}, v{ob+2}")
            E(f"v_permlane16_swap_b32 v{ob+1}, v{ob+3}")
            E(f"buffer_store_dwordx4 {q4(ob)}, v{vO}, {srd(sO)}, s{sreg} offen offset:{jj*64}{nto_mod}")
            if check:
                E(f"{MF} {q4(vZ)}, {q4(vZ0)}, {q4(ob)}, {'0' if c == 0 else q4(vZ)}")
    for i in range(8):
        E(f"s_mov_b32 s{sTmp}, {i*4096}")
        out_tile(i, lambda j, r, d: f"v_accvgpr_read_b32 v{d}, a{32*i+4*j+r}", vL + i, True, 4 * i, sTmp)
    E(f"""
    v_cmp_u_f32 vcc, v{vZ}, v{vZ}
    s_or_b64 s[{sBad}:{sBad+1}], s[{sBad}:{sBad+1}], vcc
    """)
    stamp()
    if stamps:
        E("s_waitcnt vmcnt(0)")
        stamp()
    if stamps == 2:
        E(f"s_mov_b64 exec, 1\nv_mov_b32 v{vS}, 0")
        for k in range(nst[0]):
            E(f"v_mov_b32 v{vS+2}, s{sST+2*k}\nv_sub_u32 v{vS+3}, 0, v{vS+2}\ns_nop 4")
            E(f"buffer_atomic_umax v{vS+2}, v{vS}, {srd(sWS)}, 0 offen offset:{8*k}")
            E(f"buffer_atomic_umax v{vS+3}, v{vS}, {srd(sWS)}, 0 offen offset:{8*k+4}")
            E("s_waitcnt vmcnt(0)")
        E("s_mov_b64 exec, -1")
    elif stamps:
        E(f"s_lshl_b32 s28, s2, 2\ns_add_u32 s28, s28, s{sW}\ns_mul_i32 s28, s28, {8*nst[0]}\nv_mov_b32 v{vS}, 0")
        for k in range(nst[0]):
            E(f"v_mov_b32 v{vS+2}, s{sST+2*k}\nv_mov_b32 v{vS+3}, s{sST+2*k+1}\ns_nop 4")
            E(f"buffer_store_dwordx2 v[{vS+2}:{vS+3}], v{vS}, {srd(sWS)}, s28 offen offset:{8*k}")
            E("s_waitcnt vmcnt(0)")
    if opt.get("twice"):
        E(f"""
        s_waitcnt vmcnt(0)
        s_barrier
        s_sub_u32 s31, s31, 1
        s_cbranch_scc1 L_again_done
        v_mbcnt_lo_u32_b32 v13, -1, 0
        v_mbcnt_hi_u32_b32 v13, -1, v13
        v_and_b32 v14, 15, v13
        v_lshrrev_b32 v15, 4, v13
        s_lshl_b32 s28, s{sW}, 7
        v_add_u32 v16, s28, v14
        v_lshlrev_b32 v16, 8, v16
        v_lshl_add_u32 v4, v15, 4, v16
        s_mov_b32 s{sOff}, 0
        s_nop 7
        s_branch L_again
        L_again_done:
        """)
    if opt.get("force_slow"):
        E(f"s_mov_b64 s[{sBad}:{sBad+1}], -1")
    E(f"""
    s_cmp_eq_u64 s[{sBad}:{sBad+1}], 0
    s_cbranch_scc1 L_end
    """)
    main = pad_hazards(insert_waits(S))

    idx = [k for k, x in enumerate(main) if x.tag == "loop"]
    assert len(idx) == NITER + 1
    segs = [[x.text for x in main[idx[k] + 1: idx[k + 1]]] for k in range(NITER)]
    for k in range(1, NITER):
        assert segs[k] == segs[0], f"loop body {k} differs"
    a = pre
    for x in main[:idx[0]]: a(x.text)
    a(f"s_mov_b32 s{sCnt}, {NITER-1}")
    if opt.get("align"): a(f".p2align {opt['align']}")
    a("L_loop:")
    for x in segs[0]: a(x)
    a(f"s_sub_u32 s{sCnt}, s{sCnt}, 1")
    a("s_cbranch_scc0 L_loop")
    for x in main[idx[-1] + 1:]: a(x.text)

    S = []
    vKd, vKd2, vM, vLs, vVd, vVr = 1, 2, 4, 6, 3, 5
    vQs = 128; vKs = 144; vVs = 176; vOs = 208
    sI, sT, sM = 28, 29, 30
    E(f"""
    s_waitcnt vmcnt(0) lgkmcnt(0)
    v_mbcnt_lo_u32_b32 v12, -1, 0
    v_mbcnt_hi_u32_b32 v12, -1, v12
    v_and_b32 v14, 15, v12
    v_lshrrev_b32 v15, 4, v12
    v_lshlrev_b32 v16, 8, v14
    v_lshl_add_u32 v{vKd}, v15, 4, v16
    v_add_u32 v{vKd2}, 4096, v{vKd}
    v_lshlrev_b32 v16, 11, v15
    v_lshl_add_u32 v{vVd}, v14, 4, v16
    s_mul_i32 s{sM}, s{sW}, {SLOT}
    s_add_u32 s{sM}, s{sM}, {SLOW_OFF}
    v_and_b32 v16, 1, v15
    v_lshrrev_b32 v17, 2, v14
    v_lshl_add_u32 v16, v16, 2, v17
    v_mul_u32_u24 v16, 1056, v16
    v_lshrrev_b32 v17, 1, v15
    v_lshl_add_u32 v16, v17, 8, v16
    v_and_b32 v17, 3, v14
    v_lshl_add_u32 v16, v17, 3, v16
    v_add_u32 v{vVr}, s{sM}, v16
    s_mov_b32 s{sI}, 0
    L_sq:
    s_lshl_b32 s{sTmp}, s{sW}, 15
    s_add_u32 s{sTmp}, s{sTmp}, s{sI}
    """)
    for s in range(4):
        E(f"buffer_load_dwordx4 {q4(vQs+4*s)}, v{vKd}, {srd(sQ)}, s{sTmp} offen offset:{s*64}")
    def slow_qk():
        for k in range(8):
            E(f"buffer_load_dwordx4 {q4(vKs+4*k)}, v{vKd if k < 4 else vKd2}, {srd(sK)}, s{sT} offen offset:{(k&3)*64}")
        E("s_waitcnt vmcnt(0)")
        for k in range(8):
            D = q4(vS + 4 * (k >> 2))
            E(f"{MF} {D}, {q4(vKs+4*k)}, {q4(vQs+4*(k&3))}, {'0' if k & 3 == 0 else D}")
    E(f"""
    v_mov_b32 v{vM}, 0xff800000
    s_mov_b32 s{sT}, 0
    L_sp1:
    """)
    slow_qk()
    for e in range(0, 8, 2):
        E(f"v_max3_f32 v{vM}, v{vM}, v{vS+e}, v{vS+e+1}")
    E(f"""
    s_add_u32 s{sT}, s{sT}, 8192
    s_cmp_lt_u32 s{sT}, 262144
    s_cbranch_scc1 L_sp1
    """)
    reduce_g(vM, vS, "v_max_f32")
    E(f"v_mov_b32 v{vLs}, 0")
    for r in range(32): E(f"v_mov_b32 v{vOs+r}, 0")
    E(f"""
    s_mov_b32 s{sT}, 0
    L_sp2:
    """)
    for b in range(8):
        E(f"s_add_u32 m0, s{sM}, {b*800}")
        E(f"buffer_load_dwordx4 v{vVd}, {srd(sV)}, s{sT} offen offset:{b*256} lds")
    slow_qk()
    for j in range(8):
        for hf in range(2):
            E(f"ds_read_b64_tr_b16 v[{vVs+4*j+2*hf}:{vVs+4*j+2*hf+1}], v{vVr} offset:{hf*512+j*32}")
    for e in range(8): E(f"v_sub_f32 v{vS+e}, v{vS+e}, v{vM}")
    for e in range(8): E(f"v_mul_f32 v{vS+e}, s{sC}, v{vS+e}")
    for e in range(8): E(f"v_exp_f32 v{vS+e}, v{vS+e}")
    for e in range(8): E(f"v_add_f32 v{vLs}, v{vLs}, v{vS+e}")
    for k in range(4): E(f"v_cvt_pk_bf16_f32 v{vP+k}, v{vS+2*k}, v{vS+2*k+1}")
    E("s_waitcnt lgkmcnt(0)")
    for j in range(8):
        D = q4(vOs + 4 * j)
        E(f"{MF} {D}, {q4(vVs+4*j)}, {q4(vP)}, {D}")
    E(f"""
    s_nop 7
    s_add_u32 s{sT}, s{sT}, 8192
    s_cmp_lt_u32 s{sT}, 262144
    s_cbranch_scc1 L_sp2
    """)
    reduce_g(vLs, vS, "v_add_f32")
    E(f"v_rcp_f32 v{vLs}, v{vLs}")
    out_tile(0, lambda j, r, d: f"v_mov_b32 v{d}, v{vOs+4*j+r}", vLs, False, 0, sI)
    E(f"""
    s_nop 7
    s_add_u32 s{sI}, s{sI}, 4096
    s_cmp_lt_u32 s{sI}, 32768
    s_cbranch_scc1 L_sq
    """)
    for x in pad_hazards(insert_waits(S, hoist=False)): a(x.text)
    a("L_end:\ns_waitcnt vmcnt(0)\ns_endpgm")
    return a.text(256, 256, LDS_BYTES)

if __name__ == "__main__":
    out = sys.argv[1]
    opt = {}
    for kv in sys.argv[2:]:
        k, v = kv.split("=")
        opt[k] = int(v)
    open(out, "w").write(gen(opt))
```

```python
import sys, struct, math
from common import *
from ir import *

MF = "v_mfma_f32_16x16x32_bf16"
R = 6
SLOT = 8448
KV_OFF = R * SLOT
SLOW_OFF = 2 * KV_OFF
LDS_BYTES = SLOW_OFF + 4 * SLOT
NT = 32
f2u = lambda x: struct.unpack("<I", struct.pack("<f", x))[0]
CSCALE = f2u(math.log2(math.e) / math.sqrt(128.0))
L_LO = f2u(2.0 ** -16); L_HI = f2u(2.0 ** 64)

vKrd, vVrd, vKdma, vVdma = 0, 1, 2, 3
vL = 4
vP = 12
vS = 20
vF = 36
vQ = 128
def quad(k): return vF + 4 * k
def q4(b): return f"v[{b}:{b+3}]"
def Kreg(t, k):
    if k in (1, 5, 6, 7): return quad({1: 0, 5: 1, 6: 2, 7: 3}[k])
    if k == 4: return quad(21 + t % 2)
    return quad(6 + 3 * (t % 3) + {0: 0, 2: 1, 3: 2}[k])
def Vreg(t, j):
    if j in (1, 7): return quad({1: 4, 7: 5}[j])
    if j in (4, 5, 6): return quad(6 + 3 * ((t - 1) % 3) + (j - 4))
    return quad(15 + 3 * (t % 2) + {0: 0, 2: 1, 3: 2}[j])
sQ, sK, sV, sO = 4, 8, 12, 16
sOff, sM0, sCnt, sC, sTmp = 20, 21, 22, 23, 24
sBad = 26
sW = 3
sWS = 32
sST = 40

def srd(b): return f"s[{b}:{b+3}]"

def gen(opt):
    cm = lambda k: "".join(m for b, m in ((1, " sc0"), (2, " sc1"), (4, " nt")) if opt.get(k, 0) & b)
    nt_mod = cm("nt"); ntq_mod = cm("ntq"); nto_mod = cm("nto")
    stamps = opt.get("stamps", 0)
    nst = [0]
    TIMEOP = "s_memtime" if stamps == 1 else "s_memrealtime"
    S = []
    def E(text, **kw):
        for l in text.split("\n"):
            l = l.strip()
            if l: S.append(I(l, **kw))
    def stamp():
        if not stamps: return
        k = nst[0]; nst[0] += 1
        S.append(I(f"{TIMEOP} s[{sST+2*k}:{sST+2*k+1}]", tag="smem_ok"))
        S.append(I("s_waitcnt lgkmcnt(0)"))

    def dsK(t, k):
        T, s = k >> 2, k & 3
        return I(f"ds_read_b128 {q4(Kreg(t,k))}, v{vKrd} offset:{(t%R)*SLOT + T*512 + s*64}")
    def dsV(t, j, hf):
        b = Vreg(t, j) + 2 * hf
        return I(f"ds_read_b64_tr_b16 v[{b}:{b+1}], v{vVrd} offset:{(t%R)*SLOT + hf*512 + j*32}")
    def dma(t, k):
        base = (t % R) * SLOT + (KV_OFF if k >= 2 else 0) + [0, 2176, 0, 3200][k]
        off = ["", " offset:2048", "", " offset:1024"][k]
        m = I(f"s_add_u32 m0, s{sM0}, {base}")
        ld = I(f"buffer_load_dwordx4 v{vKdma if k < 2 else vVdma}, {srd(sK if k < 2 else sV)}, s{sOff} offen{off}{nt_mod} lds",
               tok_w=f"tile{t}{'K' if k < 2 else 'V'}")
        return m, ld

    pre = Asm()
    pre(f"""
    s_cmp_ge_u32 s2, 256
    s_cbranch_scc1 L_end
    s_load_dwordx4 s[4:7], s[0:1], 0
    s_load_dwordx4 s[12:15], s[0:1], 16
    """)
    if stamps:
        pre(f"s_load_dwordx2 s[{sWS}:{sWS+1}], s[0:1], {32 if stamps == 2 else 40}")
        pre(f"{TIMEOP} s[{sST}:{sST+1}]"); nst[0] = 1
    pre(f"""
    v_lshrrev_b32 v12, 6, v0
    v_and_b32 v13, 63, v0
    v_readfirstlane_b32 s{sW}, v12
    v_and_b32 v14, 15, v13
    v_lshrrev_b32 v15, 4, v13
    s_lshl_b32 s28, s2, 17
    s_lshl_b32 s29, s2, 18
    s_mov_b32 s{sC}, {hex(CSCALE)}
    s_mul_i32 s{sM0}, s{sW}, 1056
    s_mov_b32 s{sOff}, 0
    s_mov_b64 s[{sBad}:{sBad+1}], 0
    v_lshrrev_b32 v16, 1, v15
    v_lshlrev_b32 v16, 4, v16
    v_and_b32 v17, 1, v15
    v_lshlrev_b32 v17, 2, v17
    v_add3_u32 v16, v16, v17, v12
    v_lshlrev_b32 v16, 8, v16
    v_lshl_add_u32 v{vKdma}, v14, 4, v16
    v_lshl_add_u32 v16, v15, 3, v12
    v_lshlrev_b32 v16, 8, v16
    v_lshl_add_u32 v{vVdma}, v14, 4, v16
    v_lshl_add_u32 v16, v12, 7, v14
    v_lshlrev_b32 v16, 8, v16
    v_lshl_add_u32 v4, v15, 4, v16
    s_waitcnt lgkmcnt(0)
    s_add_u32 s8, s6, s29
    s_addc_u32 s9, s7, 0
    s_mov_b32 s10, 262144
    s_mov_b32 s11, 0x00020000
    s_add_u32 s16, s14, s28
    s_addc_u32 s17, s15, 0
    s_mov_b32 s18, 131072
    s_mov_b32 s19, 0x00020000
    s_add_u32 s12, s12, s29
    s_addc_u32 s13, s13, 0
    s_mov_b32 s14, 262144
    s_mov_b32 s15, 0x00020000
    s_add_u32 s4, s4, s28
    s_addc_u32 s5, s5, 0
    s_mov_b32 s6, 131072
    s_mov_b32 s7, 0x00020000
    """)
    if stamps:
        pre(f"""
        s_mov_b32 s{sWS+2}, {256 if stamps == 2 else 268435456}
        s_mov_b32 s{sWS+3}, 0x00020000
        """)
    if opt.get("twice"):
        pre(f"s_mov_b32 s31, 1\nv_mov_b32 v5, v4\nv_accvgpr_write_b32 a0, v4\nL_again:")
    def tile_dma(t):
        for k in range(4):
            m, ld = dma(t, k)
            S.append(m); S.append(ld)
        E(f"s_add_u32 s{sOff}, s{sOff}, 8192")
    tile_dma(0)
    for i in range(8):
        E(f"s_mov_b32 s{sTmp}, {i*4096}")
        for s in range(4):
            E(f"buffer_load_dwordx4 {q4(vQ+16*i+4*s)}, v4, {srd(sQ)}, s{sTmp} offen offset:{s*64}{ntq_mod}")
    for t in range(1, R - 1):
        tile_dma(t)
    E(f"""
    v_and_b32 v16, 3, v14
    v_lshrrev_b32 v17, 3, v14
    v_lshl_add_u32 v16, v17, 2, v16
    v_mul_u32_u24 v16, 1056, v16
    v_lshrrev_b32 v17, 2, v14
    v_and_b32 v17, 1, v17
    v_lshl_add_u32 v16, v17, 8, v16
    v_lshl_add_u32 v{vKrd}, v15, 4, v16
    v_and_b32 v16, 1, v15
    v_lshrrev_b32 v17, 2, v14
    v_lshl_add_u32 v16, v16, 2, v17
    v_mul_u32_u24 v16, 1056, v16
    v_lshrrev_b32 v17, 1, v15
    v_lshl_add_u32 v16, v17, 8, v16
    v_and_b32 v17, 3, v14
    v_lshl_add_u32 v16, v17, 3, v16
    v_add_u32 v{vVrd}, {KV_OFF}, v16
    """)

    NU = NT * 8
    first = -8; last = NU + 1
    mf = {}
    head = {}
    mem = {}
    val = {}
    pre_slot = {}
    def put(d, G, x): d.setdefault(G, []).append(x)
    for n in range(NU):
        i, t = n % 8, n // 8
        b = n & 1
        for k in range(8):
            T, s = k >> 2, k & 3
            D = q4(vS + 8 * b + 4 * T)
            mf[16 * (n - 1) + k] = I(f"{MF} {D}, {q4(Kreg(t,k))}, {q4(vQ+16*i+4*s)}, {'0' if s == 0 else D}")
        for j in range(8):
            A = f"a[{32*i+4*j}:{32*i+4*j+3}]"
            mf[16 * (n + 1) + 8 + j] = I(f"{MF} {A}, {q4(Vreg(t,j))}, {q4(vP+4*b)}, {'0' if t == 0 else A}")
        for e in range(8):
            x = vS + 8 * b + e
            put(val, 16 * n + 2 * e, I(f"v_exp_f32 v{x}, v{x}"))
            if t == 0 and e == 0:
                put(val, 16 * n + 2 * e + 3, I(f"v_mov_b32 v{vL+i}, v{x}"))
            else:
                put(val, 16 * n + 2 * e + 3, I(f"v_add_f32 v{vL+i}, v{vL+i}, v{x}"))
        for k in range(4):
            x = vS + 8 * b + 2 * k
            put(val, 16 * n + 4 * k + 7, I(f"v_cvt_pk_bf16_f32 v{vP+4*b+k}, v{x}, v{x+1}"))
    for t in range(-1, NT):
        g0 = lambda sl, g: 16 * (8 * t + sl) + g
        if t >= 0:
            put(mem, g0(0, 1), dsV(t, 6, 0)); put(mem, g0(0, 5), dsV(t, 6, 1))
            put(mem, g0(0, 9), dsV(t, 1, 0)); put(mem, g0(0, 13), dsV(t, 1, 1))
            put(mem, g0(1, 1), dsV(t, 7, 0)); put(mem, g0(1, 5), dsV(t, 7, 1))
        if t < NT - 1:
            u = t + 1
            put(head, g0(2, 0), I("s_barrier", tok_r=[f"tile{u}K", f"tile{u}V"]))
            put(mem, g0(2, 1), dsK(u, 0)); put(mem, g0(2, 9), dsK(u, 2)); put(mem, g0(3, 9), dsK(u, 3)); put(mem, g0(4, 9), dsK(u, 4))
            put(mem, g0(2, 13), dsV(u, 0, 0)); put(mem, g0(3, 1), dsV(u, 0, 1))
            put(mem, g0(3, 13), dsV(u, 2, 0)); put(mem, g0(4, 1), dsV(u, 2, 1))
            put(mem, g0(4, 13), dsV(u, 3, 0)); put(mem, g0(5, 1), dsV(u, 3, 1))
            for k in range(4):
                m, ld = dma(t + R, k)
                put(head, g0(2 + k, 4), m); put(mem, g0(2 + k, 5), ld)
            put(head, g0(5, 6), I(f"s_add_u32 s{sOff}, s{sOff}, 8192"))
            put(mem, g0(6, 1), dsK(u, 1)); put(mem, g0(6, 5), dsK(u, 5)); put(mem, g0(6, 9), dsK(u, 6)); put(mem, g0(6, 13), dsK(u, 7))
            put(mem, g0(7, 1), dsV(u, 4, 0)); put(mem, g0(7, 5), dsV(u, 4, 1))
            put(mem, g0(7, 9), dsV(u, 5, 0)); put(mem, g0(7, 13), dsV(u, 5, 1))
    for i in range(8):
        blk = []
        for r in range(16):
            x = vQ + 16 * i + r
            tt = vL + 6 + (r & 1)
            blk += [f"v_lshlrev_b32 v{tt}, 16, v{x}", f"v_and_b32 v{x}, 0xffff0000, v{x}",
                    f"v_mul_f32 v{tt}, s{sC}, v{tt}", f"v_mul_f32 v{x}, s{sC}, v{x}",
                    f"v_cvt_pk_bf16_f32 v{x}, v{tt}, v{x}"]
        pre_slot[i - 1] = [I(z) for z in blk]
    LOOP0, PERIOD, NITER = 1, 6, 5
    for n in range(first, last + 1):
        for x in pre_slot.get(n, []): S.append(x)
        for g in range(16):
            G = 16 * n + g
            if G in mf: S.append(mf[G])
            if g == 10 and n % 8 == 1 and (n // 8 - LOOP0) % PERIOD == 0 and 0 <= (n // 8 - LOOP0) // PERIOD <= NITER:
                S.append(I("; LOOPPOINT", tag="loop"))
            for d in (head, mem, val):
                for x in d.get(G, []): S.append(x)
            if n == -6 and g == 0: stamp()
        if n == 8: stamp()
    stamp()

    tA, tB = vS, vS + 1
    vZ0 = vP
    vZ = vP + 4
    vO = 0
    E(f"""
    v_mbcnt_lo_u32_b32 v{vS+2}, -1, 0
    v_mbcnt_hi_u32_b32 v{vS+2}, -1, v{vS+2}
    v_and_b32 v{vS+3}, 15, v{vS+2}
    v_lshrrev_b32 v{vS+2}, 4, v{vS+2}
    s_lshl_b32 s28, s{sW}, 7
    v_add_u32 v{vS+3}, s28, v{vS+3}
    v_lshlrev_b32 v{vS+3}, 8, v{vS+3}
    v_and_b32 v{vS+4}, 1, v{vS+2}
    v_lshl_add_u32 v{vS+3}, v{vS+4}, 5, v{vS+3}
    v_lshrrev_b32 v{vS+2}, 1, v{vS+2}
    v_lshl_add_u32 v{vO}, v{vS+2}, 4, v{vS+3}
    s_mov_b32 s28, {hex(L_LO)}
    s_mov_b32 s29, {hex(L_HI - L_LO)}
    """)
    def reduce_g(x, tmp, op):
        E(f"""
        v_mov_b32 v{tmp}, v{x}
        v_permlane32_swap_b32 v{tmp}, v{x}
        {op} v{x}, v{x}, v{tmp}
        v_mov_b32 v{tmp}, v{x}
        v_permlane16_swap_b32 v{tmp}, v{x}
        {op} v{x}, v{x}, v{tmp}
        """)
    for st in range(6):
        for i in range(8):
            x, tmp = vL + i, vS + 8 + i
            E([f"v_mov_b32 v{tmp}, v{x}", f"v_permlane32_swap_b32 v{tmp}, v{x}", f"v_add_f32 v{x}, v{x}, v{tmp}",
               f"v_mov_b32 v{tmp}, v{x}", f"v_permlane16_swap_b32 v{tmp}, v{x}", f"v_add_f32 v{x}, v{x}, v{tmp}"][st])
    for i in range(8):
        x, tmp = vL + i, vS + 8 + i
        E(f"""
        v_subrev_u32 v{tmp}, s28, v{x}
        v_cmp_le_u32 vcc, s29, v{tmp}
        v_rcp_f32 v{x}, v{x}
        s_or_b64 s[{sBad}:{sBad+1}], s[{sBad}:{sBad+1}], vcc
        """)
    for r in range(4): E(f"v_mov_b32 v{vZ0+r}, 0")
    def out_tile(i, src, rinv, check, cnt0, sreg):
        for jj in range(4):
            c = cnt0 + jj
            tb = quad(2 * (c % 4))
            ob = quad(8 + c % 8)
            for z in range(8):
                E(src(2 * jj + z // 4, z % 4, tb + z))
            pr = rinv & ~1
            sel = "op_sel_hi:[1,0]" if rinv % 2 == 0 else "op_sel:[0,1] op_sel_hi:[1,1]"
            for z in range(4):
                E(f"v_pk_mul_f32 v[{tb+2*z}:{tb+2*z+1}], v[{tb+2*z}:{tb+2*z+1}], v[{pr}:{pr+1}] {sel}")
            for z in range(4):
                E(f"v_cvt_pk_bf16_f32 v{ob+z}, v{tb+2*z}, v{tb+2*z+1}")
            E(f"v_permlane16_swap_b32 v{ob}, v{ob+2}")
            E(f"v_permlane16_swap_b32 v{ob+1}, v{ob+3}")
            E(f"buffer_store_dwordx4 {q4(ob)}, v{vO}, {srd(sO)}, s{sreg} offen offset:{jj*64}{nto_mod}")
            if check:
                E(f"{MF} {q4(vZ)}, {q4(vZ0)}, {q4(ob)}, {'0' if c == 0 else q4(vZ)}")
    for i in range(8):
        E(f"s_mov_b32 s{sTmp}, {i*4096}")
        out_tile(i, lambda j, r, d: f"v_accvgpr_read_b32 v{d}, a{32*i+4*j+r}", vL + i, True, 4 * i, sTmp)
    E(f"""
    v_cmp_u_f32 vcc, v{vZ}, v{vZ}
    s_or_b64 s[{sBad}:{sBad+1}], s[{sBad}:{sBad+1}], vcc
    """)
    stamp()
    if stamps:
        E("s_waitcnt vmcnt(0)")
        stamp()
    if stamps == 2:
        E(f"s_mov_b64 exec, 1\nv_mov_b32 v{vS}, 0")
        for k in range(nst[0]):
            E(f"v_mov_b32 v{vS+2}, s{sST+2*k}\nv_sub_u32 v{vS+3}, 0, v{vS+2}\ns_nop 4")
            E(f"buffer_atomic_umax v{vS+2}, v{vS}, {srd(sWS)}, 0 offen offset:{8*k}")
            E(f"buffer_atomic_umax v{vS+3}, v{vS}, {srd(sWS)}, 0 offen offset:{8*k+4}")
            E("s_waitcnt vmcnt(0)")
        E("s_mov_b64 exec, -1")
    elif stamps == 4:
        lk = opt.get("leak", 0); lk0 = opt.get("leak0", lk - 1)
        E(f"s_add_u32 s28, s{sST}, 10000")
        if lk:
            E(f"s_sub_u32 s29, s{sST+2*lk}, s{sST+2*lk0}\ns_add_u32 s28, s28, s29")
        S.append(I("L_spin:"))
        S.append(I(f"s_memrealtime s[30:31]", tag="smem_ok"))
        E("s_waitcnt lgkmcnt(0)\ns_sub_u32 s29, s30, s28\ns_cmp_lt_i32 s29, 0\ns_cbranch_scc1 L_spin")
    elif stamps:
        E(f"s_lshl_b32 s28, s2, 2\ns_add_u32 s28, s28, s{sW}\ns_mul_i32 s28, s28, {8*nst[0]}\nv_mov_b32 v{vS}, 0")
        for k in range(nst[0]):
            E(f"v_mov_b32 v{vS+2}, s{sST+2*k}\nv_mov_b32 v{vS+3}, s{sST+2*k+1}\ns_nop 4")
            E(f"buffer_store_dwordx2 v[{vS+2}:{vS+3}], v{vS}, {srd(sWS)}, s28 offen offset:{8*k}")
            E("s_waitcnt vmcnt(0)")
    if opt.get("twice"):
        E(f"""
        s_waitcnt vmcnt(0)
        s_barrier
        s_sub_u32 s31, s31, 1
        s_cbranch_scc1 L_again_done
        v_mbcnt_lo_u32_b32 v13, -1, 0
        v_mbcnt_hi_u32_b32 v13, -1, v13
        v_and_b32 v14, 15, v13
        v_lshrrev_b32 v15, 4, v13
        s_lshl_b32 s28, s{sW}, 7
        v_add_u32 v16, s28, v14
        v_lshlrev_b32 v16, 8, v16
        v_lshl_add_u32 v4, v15, 4, v16
        s_mov_b32 s{sOff}, 0
        s_nop 7
        s_branch L_again
        L_again_done:
        """)
    if opt.get("force_slow"):
        E(f"s_mov_b64 s[{sBad}:{sBad+1}], -1")
    E(f"""
    s_cmp_eq_u64 s[{sBad}:{sBad+1}], 0
    s_cbranch_scc1 L_end
    """)
    main = pad_hazards(insert_waits(S))

    idx = [k for k, x in enumerate(main) if x.tag == "loop"]
    assert len(idx) == NITER + 1
    segs = [[x.text for x in main[idx[k] + 1: idx[k + 1]]] for k in range(NITER)]
    for k in range(1, NITER):
        assert segs[k] == segs[0], f"loop body {k} differs"
    a = pre
    for x in main[:idx[0]]: a(x.text)
    a(f"s_mov_b32 s{sCnt}, {NITER-1}")
    if opt.get("align"): a(f".p2align {opt['align']}")
    a("L_loop:")
    for x in segs[0]: a(x)
    a(f"s_sub_u32 s{sCnt}, s{sCnt}, 1")
    a("s_cbranch_scc0 L_loop")
    for x in main[idx[-1] + 1:]: a(x.text)

    S = []
    vKd, vKd2, vM, vLs, vVd, vVr = 1, 2, 4, 6, 3, 5
    vQs = 128; vKs = 144; vVs = 176; vOs = 208
    sI, sT, sM = 28, 29, 30
    E(f"""
    s_waitcnt vmcnt(0) lgkmcnt(0)
    v_mbcnt_lo_u32_b32 v12, -1, 0
    v_mbcnt_hi_u32_b32 v12, -1, v12
    v_and_b32 v14, 15, v12
    v_lshrrev_b32 v15, 4, v12
    v_lshlrev_b32 v16, 8, v14
    v_lshl_add_u32 v{vKd}, v15, 4, v16
    v_add_u32 v{vKd2}, 4096, v{vKd}
    v_lshlrev_b32 v16, 11, v15
    v_lshl_add_u32 v{vVd}, v14, 4, v16
    s_mul_i32 s{sM}, s{sW}, {SLOT}
    s_add_u32 s{sM}, s{sM}, {SLOW_OFF}
    v_and_b32 v16, 1, v15
    v_lshrrev_b32 v17, 2, v14
    v_lshl_add_u32 v16, v16, 2, v17
    v_mul_u32_u24 v16, 1056, v16
    v_lshrrev_b32 v17, 1, v15
    v_lshl_add_u32 v16, v17, 8, v16
    v_and_b32 v17, 3, v14
    v_lshl_add_u32 v16, v17, 3, v16
    v_add_u32 v{vVr}, s{sM}, v16
    s_mov_b32 s{sI}, 0
    L_sq:
    s_lshl_b32 s{sTmp}, s{sW}, 15
    s_add_u32 s{sTmp}, s{sTmp}, s{sI}
    """)
    for s in range(4):
        E(f"buffer_load_dwordx4 {q4(vQs+4*s)}, v{vKd}, {srd(sQ)}, s{sTmp} offen offset:{s*64}")
    def slow_qk():
        for k in range(8):
            E(f"buffer_load_dwordx4 {q4(vKs+4*k)}, v{vKd if k < 4 else vKd2}, {srd(sK)}, s{sT} offen offset:{(k&3)*64}")
        E("s_waitcnt vmcnt(0)")
        for k in range(8):
            D = q4(vS + 4 * (k >> 2))
            E(f"{MF} {D}, {q4(vKs+4*k)}, {q4(vQs+4*(k&3))}, {'0' if k & 3 == 0 else D}")
    E(f"""
    v_mov_b32 v{vM}, 0xff800000
    s_mov_b32 s{sT}, 0
    L_sp1:
    """)
    slow_qk()
    for e in range(0, 8, 2):
        E(f"v_max3_f32 v{vM}, v{vM}, v{vS+e}, v{vS+e+1}")
    E(f"""
    s_add_u32 s{sT}, s{sT}, 8192
    s_cmp_lt_u32 s{sT}, 262144
    s_cbranch_scc1 L_sp1
    """)
    reduce_g(vM, vS, "v_max_f32")
    E(f"v_mov_b32 v{vLs}, 0")
    for r in range(32): E(f"v_mov_b32 v{vOs+r}, 0")
    E(f"""
    s_mov_b32 s{sT}, 0
    L_sp2:
    """)
    for b in range(8):
        E(f"s_add_u32 m0, s{sM}, {b*800}")
        E(f"buffer_load_dwordx4 v{vVd}, {srd(sV)}, s{sT} offen offset:{b*256} lds")
    slow_qk()
    for j in range(8):
        for hf in range(2):
            E(f"ds_read_b64_tr_b16 v[{vVs+4*j+2*hf}:{vVs+4*j+2*hf+1}], v{vVr} offset:{hf*512+j*32}")
    for e in range(8): E(f"v_sub_f32 v{vS+e}, v{vS+e}, v{vM}")
    for e in range(8): E(f"v_mul_f32 v{vS+e}, s{sC}, v{vS+e}")
    for e in range(8): E(f"v_exp_f32 v{vS+e}, v{vS+e}")
    for e in range(8): E(f"v_add_f32 v{vLs}, v{vLs}, v{vS+e}")
    for k in range(4): E(f"v_cvt_pk_bf16_f32 v{vP+k}, v{vS+2*k}, v{vS+2*k+1}")
    E("s_waitcnt lgkmcnt(0)")
    for j in range(8):
        D = q4(vOs + 4 * j)
        E(f"{MF} {D}, {q4(vVs+4*j)}, {q4(vP)}, {D}")
    E(f"""
    s_nop 7
    s_add_u32 s{sT}, s{sT}, 8192
    s_cmp_lt_u32 s{sT}, 262144
    s_cbranch_scc1 L_sp2
    """)
    reduce_g(vLs, vS, "v_add_f32")
    E(f"v_rcp_f32 v{vLs}, v{vLs}")
    out_tile(0, lambda j, r, d: f"v_mov_b32 v{d}, v{vOs+4*j+r}", vLs, False, 0, sI)
    E(f"""
    s_nop 7
    s_add_u32 s{sI}, s{sI}, 4096
    s_cmp_lt_u32 s{sI}, 32768
    s_cbranch_scc1 L_sq
    """)
    for x in pad_hazards(insert_waits(S, hoist=False)): a(x.text)
    a("L_end:\ns_waitcnt vmcnt(0)\ns_endpgm")
    return a.text(256, 256, LDS_BYTES)

if __name__ == "__main__":
    out = sys.argv[1]
    opt = {}
    for kv in sys.argv[2:]:
        k, v = kv.split("=")
        opt[k] = int(v)
    open(out, "w").write(gen(opt))
```

```python
import sys, struct, math
from common import *
from ir import *

MF = "v_mfma_f32_16x16x32_bf16"
R = 6
SLOT = 8448
KV_OFF = R * SLOT
SLOW_OFF = 2 * KV_OFF
LDS_BYTES = SLOW_OFF + 4 * SLOT
NT = 32
f2u = lambda x: struct.unpack("<I", struct.pack("<f", x))[0]
CSCALE = f2u(math.log2(math.e) / math.sqrt(128.0))
L_LO = f2u(2.0 ** -16); L_HI = f2u(2.0 ** 64)

vKrd, vVrd, vKdma, vVdma = 0, 1, 2, 3
vL = 4
vP = 12
vS = 20
vF = 36
vQ = 128
def quad(k): return vF + 4 * k
def q4(b): return f"v[{b}:{b+3}]"
def Kreg(t, k):
    if k in (1, 5, 6, 7): return quad({1: 0, 5: 1, 6: 2, 7: 3}[k])
    if k == 4: return quad(21 + t % 2)
    return quad(6 + 3 * (t % 3) + {0: 0, 2: 1, 3: 2}[k])
def Vreg(t, j):
    if j in (1, 7): return quad({1: 4, 7: 5}[j])
    if j in (4, 5, 6): return quad(6 + 3 * ((t - 1) % 3) + (j - 4))
    return quad(15 + 3 * (t % 2) + {0: 0, 2: 1, 3: 2}[j])
sQ, sK, sV, sO = 4, 8, 12, 16
sOff, sM0, sCnt, sC, sTmp = 20, 21, 22, 23, 24
sBad = 26
sW = 3
sWS = 32
sST = 40

def srd(b): return f"s[{b}:{b+3}]"

def gen(opt):
    cm = lambda k: "".join(m for b, m in ((1, " sc0"), (2, " sc1"), (4, " nt")) if opt.get(k, 0) & b)
    nt_mod = cm("nt"); ntq_mod = cm("ntq"); nto_mod = cm("nto")
    stamps = opt.get("stamps", 0)
    nst = [0]
    TIMEOP = "s_memtime" if stamps == 1 else "s_memrealtime"
    S = []
    def E(text, **kw):
        for l in text.split("\n"):
            l = l.strip()
            if l: S.append(I(l, **kw))
    def stamp():
        if not stamps: return
        k = nst[0]; nst[0] += 1
        S.append(I(f"{TIMEOP} s[{sST+2*k}:{sST+2*k+1}]", tag="smem_ok"))
        S.append(I("s_waitcnt lgkmcnt(0)"))

    def dsK(t, k):
        T, s = k >> 2, k & 3
        return I(f"ds_read_b128 {q4(Kreg(t,k))}, v{vKrd} offset:{(t%R)*SLOT + T*512 + s*64}")
    def dsV(t, j, hf):
        b = Vreg(t, j) + 2 * hf
        return I(f"ds_read_b64_tr_b16 v[{b}:{b+1}], v{vVrd} offset:{(t%R)*SLOT + hf*512 + j*32}")
    def dma(t, k):
        base = (t % R) * SLOT + (KV_OFF if k >= 2 else 0) + [0, 2176, 0, 3200][k]
        off = ["", " offset:2048", "", " offset:1024"][k]
        m = I(f"s_add_u32 m0, s{sM0}, {base}")
        ld = I(f"buffer_load_dwordx4 v{vKdma if k < 2 else vVdma}, {srd(sK if k < 2 else sV)}, s{sOff} offen{off}{nt_mod} lds",
               tok_w=f"tile{t}{'K' if k < 2 else 'V'}")
        return m, ld

    pre = Asm()
    pre(f"""
    s_cmp_ge_u32 s2, 256
    s_cbranch_scc1 L_end
    s_load_dwordx4 s[4:7], s[0:1], 0
    s_load_dwordx4 s[12:15], s[0:1], 16
    """)
    if stamps:
        pre(f"s_load_dwordx2 s[{sWS}:{sWS+1}], s[0:1], {32 if stamps == 2 else 40}")
        pre(f"{TIMEOP} s[{sST}:{sST+1}]"); nst[0] = 1
    pre(f"""
    v_lshrrev_b32 v12, 6, v0
    v_and_b32 v13, 63, v0
    v_readfirstlane_b32 s{sW}, v12
    v_and_b32 v14, 15, v13
    v_lshrrev_b32 v15, 4, v13
    s_lshl_b32 s28, s2, 17
    s_lshl_b32 s29, s2, 18
    s_mov_b32 s{sC}, {hex(CSCALE)}
    s_mul_i32 s{sM0}, s{sW}, 1056
    s_mov_b32 s{sOff}, 0
    s_mov_b64 s[{sBad}:{sBad+1}], 0
    v_lshrrev_b32 v16, 1, v15
    v_lshlrev_b32 v16, 4, v16
    v_and_b32 v17, 1, v15
    v_lshlrev_b32 v17, 2, v17
    v_add3_u32 v16, v16, v17, v12
    v_lshlrev_b32 v16, 8, v16
    v_lshl_add_u32 v{vKdma}, v14, 4, v16
    v_lshl_add_u32 v16, v15, 3, v12
    v_lshlrev_b32 v16, 8, v16
    v_lshl_add_u32 v{vVdma}, v14, 4, v16
    v_lshl_add_u32 v16, v12, 7, v14
    v_lshlrev_b32 v16, 8, v16
    v_lshl_add_u32 v4, v15, 4, v16
    s_waitcnt lgkmcnt(0)
    s_add_u32 s8, s6, s29
    s_addc_u32 s9, s7, 0
    s_mov_b32 s10, 262144
    s_mov_b32 s11, 0x00020000
    s_add_u32 s16, s14, s28
    s_addc_u32 s17, s15, 0
    s_mov_b32 s18, 131072
    s_mov_b32 s19, 0x00020000
    s_add_u32 s12, s12, s29
    s_addc_u32 s13, s13, 0
    s_mov_b32 s14, 262144
    s_mov_b32 s15, 0x00020000
    s_add_u32 s4, s4, s28
    s_addc_u32 s5, s5, 0
    s_mov_b32 s6, 131072
    s_mov_b32 s7, 0x00020000
    """)
    if stamps:
        pre(f"""
        s_mov_b32 s{sWS+2}, {256 if stamps == 2 else 268435456}
        s_mov_b32 s{sWS+3}, 0x00020000
        """)
    if opt.get("twice"):
        pre(f"s_mov_b32 s31, 1\nv_mov_b32 v5, v4\nv_accvgpr_write_b32 a0, v4\nL_again:")
    def tile_dma(t):
        for k in range(4):
            m, ld = dma(t, k)
            S.append(m); S.append(ld)
        E(f"s_add_u32 s{sOff}, s{sOff}, 8192")
    tile_dma(0)
    for i in range(8):
        E(f"s_mov_b32 s{sTmp}, {i*4096}")
        for s in range(4):
            E(f"buffer_load_dwordx4 {q4(vQ+16*i+4*s)}, v4, {srd(sQ)}, s{sTmp} offen offset:{s*64}{ntq_mod}")
    for t in range(1, R - 1):
        tile_dma(t)
    E(f"""
    v_and_b32 v16, 3, v14
    v_lshrrev_b32 v17, 3, v14
    v_lshl_add_u32 v16, v17, 2, v16
    v_mul_u32_u24 v16, 1056, v16
    v_lshrrev_b32 v17, 2, v14
    v_and_b32 v17, 1, v17
    v_lshl_add_u32 v16, v17, 8, v16
    v_lshl_add_u32 v{vKrd}, v15, 4, v16
    v_and_b32 v16, 1, v15
    v_lshrrev_b32 v17, 2, v14
    v_lshl_add_u32 v16, v16, 2, v17
    v_mul_u32_u24 v16, 1056, v16
    v_lshrrev_b32 v17, 1, v15
    v_lshl_add_u32 v16, v17, 8, v16
    v_and_b32 v17, 3, v14
    v_lshl_add_u32 v16, v17, 3, v16
    v_add_u32 v{vVrd}, {KV_OFF}, v16
    """)

    NU = NT * 8
    first = -8; last = NU + 1
    mf = {}
    head = {}
    mem = {}
    val = {}
    pre_slot = {}
    def put(d, G, x): d.setdefault(G, []).append(x)
    for n in range(NU):
        i, t = n % 8, n // 8
        b = n & 1
        for k in range(8):
            T, s = k >> 2, k & 3
            D = q4(vS + 8 * b + 4 * T)
            mf[16 * (n - 1) + k] = I(f"{MF} {D}, {q4(Kreg(t,k))}, {q4(vQ+16*i+4*s)}, {'0' if s == 0 else D}")
        for j in range(8):
            A = f"a[{32*i+4*j}:{32*i+4*j+3}]"
            mf[16 * (n + 1) + 8 + j] = I(f"{MF} {A}, {q4(Vreg(t,j))}, {q4(vP+4*b)}, {'0' if t == 0 else A}")
        for e in range(8):
            x = vS + 8 * b + e
            put(val, 16 * n + 2 * e, I(f"v_exp_f32 v{x}, v{x}"))
            if t == 0 and e == 0:
                put(val, 16 * n + 2 * e + 3, I(f"v_mov_b32 v{vL+i}, v{x}"))
            else:
                put(val, 16 * n + 2 * e + 3, I(f"v_add_f32 v{vL+i}, v{vL+i}, v{x}"))
        for k in range(4):
            x = vS + 8 * b + 2 * k
            put(val, 16 * n + 4 * k + 7, I(f"v_cvt_pk_bf16_f32 v{vP+4*b+k}, v{x}, v{x+1}"))
    for t in range(-1, NT):
        g0 = lambda sl, g: 16 * (8 * t + sl) + g
        if t >= 0:
            put(mem, g0(0, 1), dsV(t, 6, 0)); put(mem, g0(0, 5), dsV(t, 6, 1))
            put(mem, g0(0, 9), dsV(t, 1, 0)); put(mem, g0(0, 13), dsV(t, 1, 1))
            put(mem, g0(1, 1), dsV(t, 7, 0)); put(mem, g0(1, 5), dsV(t, 7, 1))
        if t < NT - 1:
            u = t + 1
            put(head, g0(2, 0), I("s_barrier", tok_r=[f"tile{u}K", f"tile{u}V"]))
            put(mem, g0(2, 1), dsK(u, 0)); put(mem, g0(2, 9), dsK(u, 2)); put(mem, g0(3, 9), dsK(u, 3)); put(mem, g0(4, 9), dsK(u, 4))
            put(mem, g0(2, 13), dsV(u, 0, 0)); put(mem, g0(3, 1), dsV(u, 0, 1))
            put(mem, g0(3, 13), dsV(u, 2, 0)); put(mem, g0(4, 1), dsV(u, 2, 1))
            put(mem, g0(4, 13), dsV(u, 3, 0)); put(mem, g0(5, 1), dsV(u, 3, 1))
            for k in range(4):
                m, ld = dma(t + R, k)
                put(head, g0(2 + k, 4), m); put(mem, g0(2 + k, 5), ld)
            put(head, g0(5, 6), I(f"s_add_u32 s{sOff}, s{sOff}, 8192"))
            put(mem, g0(6, 1), dsK(u, 1)); put(mem, g0(6, 5), dsK(u, 5)); put(mem, g0(6, 9), dsK(u, 6)); put(mem, g0(6, 13), dsK(u, 7))
            put(mem, g0(7, 1), dsV(u, 4, 0)); put(mem, g0(7, 5), dsV(u, 4, 1))
            put(mem, g0(7, 9), dsV(u, 5, 0)); put(mem, g0(7, 13), dsV(u, 5, 1))
    for i in range(8):
        blk = []
        for r in range(16):
            x = vQ + 16 * i + r
            tt = vL + 6 + (r & 1)
            blk += [f"v_lshlrev_b32 v{tt}, 16, v{x}", f"v_and_b32 v{x}, 0xffff0000, v{x}",
                    f"v_mul_f32 v{tt}, s{sC}, v{tt}", f"v_mul_f32 v{x}, s{sC}, v{x}",
                    f"v_cvt_pk_bf16_f32 v{x}, v{tt}, v{x}"]
        pre_slot[i - 1] = [I(z) for z in blk]
    LOOP0, PERIOD, NITER = 1, 6, 5
    for n in range(first, last + 1):
        for x in pre_slot.get(n, []): S.append(x)
        for g in range(16):
            G = 16 * n + g
            if G in mf: S.append(mf[G])
            if g == 10 and n % 8 == 1 and (n // 8 - LOOP0) % PERIOD == 0 and 0 <= (n // 8 - LOOP0) // PERIOD <= NITER:
                S.append(I("; LOOPPOINT", tag="loop"))
            for d in (head, mem, val):
                for x in d.get(G, []): S.append(x)
            if n == -6 and g == 0: stamp()
        if n == 8: stamp()
    stamp()

    tA, tB = vS, vS + 1
    vZ0 = vP
    vZ = vP + 4
    vO = 0
    E(f"""
    v_mbcnt_lo_u32_b32 v{vS+2}, -1, 0
    v_mbcnt_hi_u32_b32 v{vS+2}, -1, v{vS+2}
    v_and_b32 v{vS+3}, 15, v{vS+2}
    v_lshrrev_b32 v{vS+2}, 4, v{vS+2}
    s_lshl_b32 s28, s{sW}, 7
    v_add_u32 v{vS+3}, s28, v{vS+3}
    v_lshlrev_b32 v{vS+3}, 8, v{vS+3}
    v_and_b32 v{vS+4}, 1, v{vS+2}
    v_lshl_add_u32 v{vS+3}, v{vS+4}, 5, v{vS+3}
    v_lshrrev_b32 v{vS+2}, 1, v{vS+2}
    v_lshl_add_u32 v{vO}, v{vS+2}, 4, v{vS+3}
    s_mov_b32 s28, {hex(L_LO)}
    s_mov_b32 s29, {hex(L_HI - L_LO)}
    """)
    def reduce_g(x, tmp, op):
        E(f"""
        v_mov_b32 v{tmp}, v{x}
        v_permlane32_swap_b32 v{tmp}, v{x}
        {op} v{x}, v{x}, v{tmp}
        v_mov_b32 v{tmp}, v{x}
        v_permlane16_swap_b32 v{tmp}, v{x}
        {op} v{x}, v{x}, v{tmp}
        """)
    for st in range(6):
        for i in range(8):
            x, tmp = vL + i, vS + 8 + i
            E([f"v_mov_b32 v{tmp}, v{x}", f"v_permlane32_swap_b32 v{tmp}, v{x}", f"v_add_f32 v{x}, v{x}, v{tmp}",
               f"v_mov_b32 v{tmp}, v{x}", f"v_permlane16_swap_b32 v{tmp}, v{x}", f"v_add_f32 v{x}, v{x}, v{tmp}"][st])
    for i in range(8):
        x, tmp = vL + i, vS + 8 + i
        E(f"""
        v_subrev_u32 v{tmp}, s28, v{x}
        v_cmp_le_u32 vcc, s29, v{tmp}
        v_rcp_f32 v{x}, v{x}
        s_or_b64 s[{sBad}:{sBad+1}], s[{sBad}:{sBad+1}], vcc
        """)
    for r in range(4): E(f"v_mov_b32 v{vZ0+r}, 0")
    def out_tile(i, src, rinv, check, cnt0, sreg):
        for jj in range(4):
            c = cnt0 + jj
            tb = quad(2 * (c % 4))
            ob = quad(8 + c % 8)
            for z in range(8):
                E(src(2 * jj + z // 4, z % 4, tb + z))
            pr = rinv & ~1
            sel = "op_sel_hi:[1,0]" if rinv % 2 == 0 else "op_sel:[0,1] op_sel_hi:[1,1]"
            for z in range(4):
                E(f"v_pk_mul_f32 v[{tb+2*z}:{tb+2*z+1}], v[{tb+2*z}:{tb+2*z+1}], v[{pr}:{pr+1}] {sel}")
            for z in range(4):
                E(f"v_cvt_pk_bf16_f32 v{ob+z}, v{tb+2*z}, v{tb+2*z+1}")
            E(f"v_permlane16_swap_b32 v{ob}, v{ob+2}")
            E(f"v_permlane16_swap_b32 v{ob+1}, v{ob+3}")
            E(f"buffer_store_dwordx4 {q4(ob)}, v{vO}, {srd(sO)}, s{sreg} offen offset:{jj*64}{nto_mod}")
            if check:
                E(f"{MF} {q4(vZ)}, {q4(vZ0)}, {q4(ob)}, {'0' if c == 0 else q4(vZ)}")
    for i in range(8):
        E(f"s_mov_b32 s{sTmp}, {i*4096}")
        out_tile(i, lambda j, r, d: f"v_accvgpr_read_b32 v{d}, a{32*i+4*j+r}", vL + i, True, 4 * i, sTmp)
    E(f"""
    v_cmp_u_f32 vcc, v{vZ}, v{vZ}
    s_or_b64 s[{sBad}:{sBad+1}], s[{sBad}:{sBad+1}], vcc
    """)
    stamp()
    if stamps:
        E("s_waitcnt vmcnt(0)")
        stamp()
    if stamps == 2:
        E(f"s_mov_b64 exec, 1\nv_mov_b32 v{vS}, 0")
        for k in range(nst[0]):
            E(f"v_mov_b32 v{vS+2}, s{sST+2*k}\nv_sub_u32 v{vS+3}, 0, v{vS+2}\ns_nop 4")
            E(f"buffer_atomic_umax v{vS+2}, v{vS}, {srd(sWS)}, 0 offen offset:{8*k}")
            E(f"buffer_atomic_umax v{vS+3}, v{vS}, {srd(sWS)}, 0 offen offset:{8*k+4}")
            E("s_waitcnt vmcnt(0)")
        E("s_mov_b64 exec, -1")
    elif stamps == 4:
        lk = opt.get("leak", 0); lk0 = opt.get("leak0", lk - 1)
        E(f"s_add_u32 s28, s{sST}, 10000")
        if lk:
            E(f"s_sub_u32 s29, s{sST+2*lk}, s{sST+2*lk0}\ns_add_u32 s28, s28, s29")
        S.append(I("L_spin:"))
        S.append(I(f"s_memrealtime s[30:31]", tag="smem_ok"))
        E("s_waitcnt lgkmcnt(0)\ns_sub_u32 s29, s30, s28\ns_cmp_lt_i32 s29, 0\ns_cbranch_scc1 L_spin")
    elif stamps:
        E(f"s_lshl_b32 s28, s2, 2\ns_add_u32 s28, s28, s{sW}\ns_mul_i32 s28, s28, {8*nst[0]}\nv_mov_b32 v{vS}, 0")
        for k in range(nst[0]):
            E(f"v_mov_b32 v{vS+2}, s{sST+2*k}\nv_mov_b32 v{vS+3}, s{sST+2*k+1}\ns_nop 4")
            E(f"buffer_store_dwordx2 v[{vS+2}:{vS+3}], v{vS}, {srd(sWS)}, s28 offen offset:{8*k}")
            E("s_waitcnt vmcnt(0)")
    if opt.get("twice"):
        E(f"""
        s_waitcnt vmcnt(0)
        s_barrier
        s_sub_u32 s31, s31, 1
        s_cbranch_scc1 L_again_done
        v_mbcnt_lo_u32_b32 v13, -1, 0
        v_mbcnt_hi_u32_b32 v13, -1, v13
        v_and_b32 v14, 15, v13
        v_lshrrev_b32 v15, 4, v13
        s_lshl_b32 s28, s{sW}, 7
        v_add_u32 v16, s28, v14
        v_lshlrev_b32 v16, 8, v16
        v_lshl_add_u32 v4, v15, 4, v16
        s_mov_b32 s{sOff}, 0
        s_nop 7
        s_branch L_again
        L_again_done:
        """)
    if opt.get("force_slow"):
        E(f"s_mov_b64 s[{sBad}:{sBad+1}], -1")
    E(f"""
    s_cmp_eq_u64 s[{sBad}:{sBad+1}], 0
    s_cbranch_scc1 L_end
    """)
    main = pad_hazards(insert_waits(S))

    idx = [k for k, x in enumerate(main) if x.tag == "loop"]
    assert len(idx) == NITER + 1
    segs = [[x.text for x in main[idx[k] + 1: idx[k + 1]]] for k in range(NITER)]
    for k in range(1, NITER):
        assert segs[k] == segs[0], f"loop body {k} differs"
    a = pre
    if opt.get("unroll"):
        for x in main: a(x.text)
        main = []; idx = [0]; segs = [[]]
    for x in main[:idx[0]]: a(x.text)
    if not opt.get("unroll"):
        a(f"s_mov_b32 s{sCnt}, {NITER-1}")
        if opt.get("align"): a(f".p2align {opt['align']}")
        a("L_loop:")
        for x in segs[0]: a(x)
        a(f"s_sub_u32 s{sCnt}, s{sCnt}, 1")
        a("s_cbranch_scc0 L_loop")
    for x in main[idx[-1] + 1:]: a(x.text)

    S = []
    vKd, vKd2, vM, vLs, vVd, vVr = 1, 2, 4, 6, 3, 5
    vQs = 128; vKs = 144; vVs = 176; vOs = 208
    sI, sT, sM = 28, 29, 30
    E(f"""
    s_waitcnt vmcnt(0) lgkmcnt(0)
    v_mbcnt_lo_u32_b32 v12, -1, 0
    v_mbcnt_hi_u32_b32 v12, -1, v12
    v_and_b32 v14, 15, v12
    v_lshrrev_b32 v15, 4, v12
    v_lshlrev_b32 v16, 8, v14
    v_lshl_add_u32 v{vKd}, v15, 4, v16
    v_add_u32 v{vKd2}, 4096, v{vKd}
    v_lshlrev_b32 v16, 11, v15
    v_lshl_add_u32 v{vVd}, v14, 4, v16
    s_mul_i32 s{sM}, s{sW}, {SLOT}
    s_add_u32 s{sM}, s{sM}, {SLOW_OFF}
    v_and_b32 v16, 1, v15
    v_lshrrev_b32 v17, 2, v14
    v_lshl_add_u32 v16, v16, 2, v17
    v_mul_u32_u24 v16, 1056, v16
    v_lshrrev_b32 v17, 1, v15
    v_lshl_add_u32 v16, v17, 8, v16
    v_and_b32 v17, 3, v14
    v_lshl_add_u32 v16, v17, 3, v16
    v_add_u32 v{vVr}, s{sM}, v16
    s_mov_b32 s{sI}, 0
    L_sq:
    s_lshl_b32 s{sTmp}, s{sW}, 15
    s_add_u32 s{sTmp}, s{sTmp}, s{sI}
    """)
    for s in range(4):
        E(f"buffer_load_dwordx4 {q4(vQs+4*s)}, v{vKd}, {srd(sQ)}, s{sTmp} offen offset:{s*64}")
    def slow_qk():
        for k in range(8):
            E(f"buffer_load_dwordx4 {q4(vKs+4*k)}, v{vKd if k < 4 else vKd2}, {srd(sK)}, s{sT} offen offset:{(k&3)*64}")
        E("s_waitcnt vmcnt(0)")
        for k in range(8):
            D = q4(vS + 4 * (k >> 2))
            E(f"{MF} {D}, {q4(vKs+4*k)}, {q4(vQs+4*(k&3))}, {'0' if k & 3 == 0 else D}")
    E(f"""
    v_mov_b32 v{vM}, 0xff800000
    s_mov_b32 s{sT}, 0
    L_sp1:
    """)
    slow_qk()
    for e in range(0, 8, 2):
        E(f"v_max3_f32 v{vM}, v{vM}, v{vS+e}, v{vS+e+1}")
    E(f"""
    s_add_u32 s{sT}, s{sT}, 8192
    s_cmp_lt_u32 s{sT}, 262144
    s_cbranch_scc1 L_sp1
    """)
    reduce_g(vM, vS, "v_max_f32")
    E(f"v_mov_b32 v{vLs}, 0")
    for r in range(32): E(f"v_mov_b32 v{vOs+r}, 0")
    E(f"""
    s_mov_b32 s{sT}, 0
    L_sp2:
    """)
    for b in range(8):
        E(f"s_add_u32 m0, s{sM}, {b*800}")
        E(f"buffer_load_dwordx4 v{vVd}, {srd(sV)}, s{sT} offen offset:{b*256} lds")
    slow_qk()
    for j in range(8):
        for hf in range(2):
            E(f"ds_read_b64_tr_b16 v[{vVs+4*j+2*hf}:{vVs+4*j+2*hf+1}], v{vVr} offset:{hf*512+j*32}")
    for e in range(8): E(f"v_sub_f32 v{vS+e}, v{vS+e}, v{vM}")
    for e in range(8): E(f"v_mul_f32 v{vS+e}, s{sC}, v{vS+e}")
    for e in range(8): E(f"v_exp_f32 v{vS+e}, v{vS+e}")
    for e in range(8): E(f"v_add_f32 v{vLs}, v{vLs}, v{vS+e}")
    for k in range(4): E(f"v_cvt_pk_bf16_f32 v{vP+k}, v{vS+2*k}, v{vS+2*k+1}")
    E("s_waitcnt lgkmcnt(0)")
    for j in range(8):
        D = q4(vOs + 4 * j)
        E(f"{MF} {D}, {q4(vVs+4*j)}, {q4(vP)}, {D}")
    E(f"""
    s_nop 7
    s_add_u32 s{sT}, s{sT}, 8192
    s_cmp_lt_u32 s{sT}, 262144
    s_cbranch_scc1 L_sp2
    """)
    reduce_g(vLs, vS, "v_add_f32")
    E(f"v_rcp_f32 v{vLs}, v{vLs}")
    out_tile(0, lambda j, r, d: f"v_mov_b32 v{d}, v{vOs+4*j+r}", vLs, False, 0, sI)
    E(f"""
    s_nop 7
    s_add_u32 s{sI}, s{sI}, 4096
    s_cmp_lt_u32 s{sI}, 32768
    s_cbranch_scc1 L_sq
    """)
    for x in pad_hazards(insert_waits(S, hoist=False)): a(x.text)
    a("L_end:\ns_waitcnt vmcnt(0)\ns_endpgm")
    return a.text(256, 256, LDS_BYTES)

if __name__ == "__main__":
    out = sys.argv[1]
    opt = {}
    for kv in sys.argv[2:]:
        k, v = kv.split("=")
        opt[k] = int(v)
    open(out, "w").write(gen(opt))
```

```python
import sys, struct, math
from common import *
from ir import *

MF = "v_mfma_f32_16x16x32_bf16"
R = 6
SLOT = 8448
KV_OFF = R * SLOT
SLOW_OFF = 2 * KV_OFF
LDS_BYTES = SLOW_OFF + 4 * SLOT
NT = 32
f2u = lambda x: struct.unpack("<I", struct.pack("<f", x))[0]
CSCALE = f2u(math.log2(math.e) / math.sqrt(128.0))
L_LO = f2u(2.0 ** -16); L_HI = f2u(2.0 ** 64)

vKrd, vVrd, vKdma, vVdma = 0, 1, 2, 3
vL = 4
vP = 12
vS = 20
vF = 36
vQ = 128
def quad(k): return vF + 4 * k
def q4(b): return f"v[{b}:{b+3}]"
def Kreg(t, k):
    if k in (1, 5, 6, 7): return quad({1: 0, 5: 1, 6: 2, 7: 3}[k])
    if k == 4: return quad(21 + t % 2)
    return quad(6 + 3 * (t % 3) + {0: 0, 2: 1, 3: 2}[k])
def Vreg(t, j):
    if j in (1, 7): return quad({1: 4, 7: 5}[j])
    if j in (4, 5, 6): return quad(6 + 3 * ((t - 1) % 3) + (j - 4))
    return quad(15 + 3 * (t % 2) + {0: 0, 2: 1, 3: 2}[j])
sQ, sK, sV, sO = 4, 8, 12, 16
sOff, sM0, sCnt, sC, sTmp = 20, 21, 22, 23, 24
sBad = 26
sW = 3
sWS = 32
sST = 40

def srd(b): return f"s[{b}:{b+3}]"

def gen(opt):
    cm = lambda k: "".join(m for b, m in ((1, " sc0"), (2, " sc1"), (4, " nt")) if opt.get(k, 0) & b)
    nt_mod = cm("nt"); ntq_mod = cm("ntq"); nto_mod = cm("nto")
    stamps = opt.get("stamps", 0)
    nst = [0]
    TIMEOP = "s_memtime" if stamps == 1 else "s_memrealtime"
    S = []
    def E(text, **kw):
        for l in text.split("\n"):
            l = l.strip()
            if l: S.append(I(l, **kw))
    def stamp():
        if not stamps: return
        k = nst[0]; nst[0] += 1
        S.append(I(f"{TIMEOP} s[{sST+2*k}:{sST+2*k+1}]", tag="smem_ok"))
        S.append(I("s_waitcnt lgkmcnt(0)"))

    def dsK(t, k):
        T, s = k >> 2, k & 3
        return I(f"ds_read_b128 {q4(Kreg(t,k))}, v{vKrd} offset:{(t%R)*SLOT + T*512 + s*64}")
    def dsV(t, j, hf):
        b = Vreg(t, j) + 2 * hf
        return I(f"ds_read_b64_tr_b16 v[{b}:{b+1}], v{vVrd} offset:{(t%R)*SLOT + hf*512 + j*32}")
    def dma(t, k):
        base = (t % R) * SLOT + (KV_OFF if k >= 2 else 0) + [0, 2176, 0, 3200][k]
        off = ["", " offset:2048", "", " offset:1024"][k]
        m = I(f"s_add_u32 m0, s{sM0}, {base}")
        ld = I(f"buffer_load_dwordx4 v{vKdma if k < 2 else vVdma}, {srd(sK if k < 2 else sV)}, s{sOff} offen{off}{nt_mod} lds",
               tok_w=f"tile{t}{'K' if k < 2 else 'V'}")
        return m, ld

    pre = Asm()
    pre(f"""
    s_cmp_ge_u32 s2, 256
    s_cbranch_scc1 L_end
    s_load_dwordx4 s[4:7], s[0:1], 0
    s_load_dwordx4 s[12:15], s[0:1], 16
    """)
    if stamps:
        pre(f"s_load_dwordx2 s[{sWS}:{sWS+1}], s[0:1], {32 if stamps == 2 else 40}")
        pre(f"{TIMEOP} s[{sST}:{sST+1}]"); nst[0] = 1
    if opt.get("pf"):
        pre(f"""
        s_getpc_b64 s[28:29]
        L_pc:
        s_lshr_b32 s30, s2, 3
        s_lshl_b32 s30, s30, 12
        v_lshl_add_u32 v16, v0, 4, s30
        v_min_u32 v16, L_fin-L_pc-16, v16
        v_mov_b32 v17, s29
        v_add_co_u32 v16, vcc, s28, v16
        v_addc_co_u32 v17, vcc, 0, v17, vcc
        global_load_dwordx4 v[20:23], v[16:17], off
        """)
    pre(f"""
    v_lshrrev_b32 v12, 6, v0
    v_and_b32 v13, 63, v0
    v_readfirstlane_b32 s{sW}, v12
    v_and_b32 v14, 15, v13
    v_lshrrev_b32 v15, 4, v13
    s_lshl_b32 s28, s2, 17
    s_lshl_b32 s29, s2, 18
    s_mov_b32 s{sC}, {hex(CSCALE)}
    s_mul_i32 s{sM0}, s{sW}, 1056
    s_mov_b32 s{sOff}, 0
    s_mov_b64 s[{sBad}:{sBad+1}], 0
    v_lshrrev_b32 v16, 1, v15
    v_lshlrev_b32 v16, 4, v16
    v_and_b32 v17, 1, v15
    v_lshlrev_b32 v17, 2, v17
    v_add3_u32 v16, v16, v17, v12
    v_lshlrev_b32 v16, 8, v16
    v_lshl_add_u32 v{vKdma}, v14, 4, v16
    v_lshl_add_u32 v16, v15, 3, v12
    v_lshlrev_b32 v16, 8, v16
    v_lshl_add_u32 v{vVdma}, v14, 4, v16
    v_lshl_add_u32 v16, v12, 7, v14
    v_lshlrev_b32 v16, 8, v16
    v_lshl_add_u32 v4, v15, 4, v16
    s_waitcnt lgkmcnt(0)
    s_add_u32 s8, s6, s29
    s_addc_u32 s9, s7, 0
    s_mov_b32 s10, 262144
    s_mov_b32 s11, 0x00020000
    s_add_u32 s16, s14, s28
    s_addc_u32 s17, s15, 0
    s_mov_b32 s18, 131072
    s_mov_b32 s19, 0x00020000
    s_add_u32 s12, s12, s29
    s_addc_u32 s13, s13, 0
    s_mov_b32 s14, 262144
    s_mov_b32 s15, 0x00020000
    s_add_u32 s4, s4, s28
    s_addc_u32 s5, s5, 0
    s_mov_b32 s6, 131072
    s_mov_b32 s7, 0x00020000
    """)
    if stamps:
        pre(f"""
        s_mov_b32 s{sWS+2}, {256 if stamps == 2 else 268435456}
        s_mov_b32 s{sWS+3}, 0x00020000
        """)
    if opt.get("twice"):
        pre(f"s_mov_b32 s31, 1\nv_mov_b32 v5, v4\nv_accvgpr_write_b32 a0, v4\nL_again:")
    def tile_dma(t):
        for k in range(4):
            m, ld = dma(t, k)
            S.append(m); S.append(ld)
        E(f"s_add_u32 s{sOff}, s{sOff}, 8192")
    tile_dma(0)
    for i in range(8):
        E(f"s_mov_b32 s{sTmp}, {i*4096}")
        for s in range(4):
            E(f"buffer_load_dwordx4 {q4(vQ+16*i+4*s)}, v4, {srd(sQ)}, s{sTmp} offen offset:{s*64}{ntq_mod}")
    for t in range(1, R - 1):
        tile_dma(t)
    E(f"""
    v_and_b32 v16, 3, v14
    v_lshrrev_b32 v17, 3, v14
    v_lshl_add_u32 v16, v17, 2, v16
    v_mul_u32_u24 v16, 1056, v16
    v_lshrrev_b32 v17, 2, v14
    v_and_b32 v17, 1, v17
    v_lshl_add_u32 v16, v17, 8, v16
    v_lshl_add_u32 v{vKrd}, v15, 4, v16
    v_and_b32 v16, 1, v15
    v_lshrrev_b32 v17, 2, v14
    v_lshl_add_u32 v16, v16, 2, v17
    v_mul_u32_u24 v16, 1056, v16
    v_lshrrev_b32 v17, 1, v15
    v_lshl_add_u32 v16, v17, 8, v16
    v_and_b32 v17, 3, v14
    v_lshl_add_u32 v16, v17, 3, v16
    v_add_u32 v{vVrd}, {KV_OFF}, v16
    """)

    NU = NT * 8
    first = -8; last = NU + 1
    mf = {}
    head = {}
    mem = {}
    val = {}
    pre_slot = {}
    def put(d, G, x): d.setdefault(G, []).append(x)
    for n in range(NU):
        i, t = n % 8, n // 8
        b = n & 1
        for k in range(8):
            T, s = k >> 2, k & 3
            D = q4(vS + 8 * b + 4 * T)
            mf[16 * (n - 1) + k] = I(f"{MF} {D}, {q4(Kreg(t,k))}, {q4(vQ+16*i+4*s)}, {'0' if s == 0 else D}")
        for j in range(8):
            A = f"a[{32*i+4*j}:{32*i+4*j+3}]"
            mf[16 * (n + 1) + 8 + j] = I(f"{MF} {A}, {q4(Vreg(t,j))}, {q4(vP+4*b)}, {'0' if t == 0 else A}")
        for e in range(8):
            x = vS + 8 * b + e
            put(val, 16 * n + 2 * e, I(f"v_exp_f32 v{x}, v{x}"))
            if t == 0 and e == 0:
                put(val, 16 * n + 2 * e + 3, I(f"v_mov_b32 v{vL+i}, v{x}"))
            else:
                put(val, 16 * n + 2 * e + 3, I(f"v_add_f32 v{vL+i}, v{vL+i}, v{x}"))
        for k in range(4):
            x = vS + 8 * b + 2 * k
            put(val, 16 * n + 4 * k + 7, I(f"v_cvt_pk_bf16_f32 v{vP+4*b+k}, v{x}, v{x+1}"))
    for t in range(-1, NT):
        g0 = lambda sl, g: 16 * (8 * t + sl) + g
        if t >= 0:
            put(mem, g0(0, 1), dsV(t, 6, 0)); put(mem, g0(0, 5), dsV(t, 6, 1))
            put(mem, g0(0, 9), dsV(t, 1, 0)); put(mem, g0(0, 13), dsV(t, 1, 1))
            put(mem, g0(1, 1), dsV(t, 7, 0)); put(mem, g0(1, 5), dsV(t, 7, 1))
        if t < NT - 1:
            u = t + 1
            put(head, g0(2, 0), I("s_barrier", tok_r=[f"tile{u}K", f"tile{u}V"]))
            put(mem, g0(2, 1), dsK(u, 0)); put(mem, g0(2, 9), dsK(u, 2)); put(mem, g0(3, 9), dsK(u, 3)); put(mem, g0(4, 9), dsK(u, 4))
            put(mem, g0(2, 13), dsV(u, 0, 0)); put(mem, g0(3, 1), dsV(u, 0, 1))
            put(mem, g0(3, 13), dsV(u, 2, 0)); put(mem, g0(4, 1), dsV(u, 2, 1))
            put(mem, g0(4, 13), dsV(u, 3, 0)); put(mem, g0(5, 1), dsV(u, 3, 1))
            for k in range(4):
                m, ld = dma(t + R, k)
                put(head, g0(2 + k, 4), m); put(mem, g0(2 + k, 5), ld)
            put(head, g0(5, 6), I(f"s_add_u32 s{sOff}, s{sOff}, 8192"))
            put(mem, g0(6, 1), dsK(u, 1)); put(mem, g0(6, 5), dsK(u, 5)); put(mem, g0(6, 9), dsK(u, 6)); put(mem, g0(6, 13), dsK(u, 7))
            put(mem, g0(7, 1), dsV(u, 4, 0)); put(mem, g0(7, 5), dsV(u, 4, 1))
            put(mem, g0(7, 9), dsV(u, 5, 0)); put(mem, g0(7, 13), dsV(u, 5, 1))
    for i in range(8):
        blk = []
        for r in range(16):
            x = vQ + 16 * i + r
            tt = vL + 6 + (r & 1)
            blk += [f"v_lshlrev_b32 v{tt}, 16, v{x}", f"v_and_b32 v{x}, 0xffff0000, v{x}",
                    f"v_mul_f32 v{tt}, s{sC}, v{tt}", f"v_mul_f32 v{x}, s{sC}, v{x}",
                    f"v_cvt_pk_bf16_f32 v{x}, v{tt}, v{x}"]
        pre_slot[i - 1] = [I(z) for z in blk]
    LOOP0, PERIOD, NITER = 1, 6, 5
    for n in range(first, last + 1):
        for x in pre_slot.get(n, []): S.append(x)
        for g in range(16):
            G = 16 * n + g
            if G in mf: S.append(mf[G])
            if g == 10 and n % 8 == 1 and (n // 8 - LOOP0) % PERIOD == 0 and 0 <= (n // 8 - LOOP0) // PERIOD <= NITER:
                S.append(I("; LOOPPOINT", tag="loop"))
            for d in (head, mem, val):
                for x in d.get(G, []): S.append(x)
            if n == -6 and g == 0: stamp()
        if n == 8: stamp()
    stamp()

    tA, tB = vS, vS + 1
    vZ0 = vP
    vZ = vP + 4
    vO = 0
    E(f"""
    v_mbcnt_lo_u32_b32 v{vS+2}, -1, 0
    v_mbcnt_hi_u32_b32 v{vS+2}, -1, v{vS+2}
    v_and_b32 v{vS+3}, 15, v{vS+2}
    v_lshrrev_b32 v{vS+2}, 4, v{vS+2}
    s_lshl_b32 s28, s{sW}, 7
    v_add_u32 v{vS+3}, s28, v{vS+3}
    v_lshlrev_b32 v{vS+3}, 8, v{vS+3}
    v_and_b32 v{vS+4}, 1, v{vS+2}
    v_lshl_add_u32 v{vS+3}, v{vS+4}, 5, v{vS+3}
    v_lshrrev_b32 v{vS+2}, 1, v{vS+2}
    v_lshl_add_u32 v{vO}, v{vS+2}, 4, v{vS+3}
    s_mov_b32 s28, {hex(L_LO)}
    s_mov_b32 s29, {hex(L_HI - L_LO)}
    """)
    def reduce_g(x, tmp, op):
        E(f"""
        v_mov_b32 v{tmp}, v{x}
        v_permlane32_swap_b32 v{tmp}, v{x}
        {op} v{x}, v{x}, v{tmp}
        v_mov_b32 v{tmp}, v{x}
        v_permlane16_swap_b32 v{tmp}, v{x}
        {op} v{x}, v{x}, v{tmp}
        """)
    for st in range(6):
        for i in range(8):
            x, tmp = vL + i, vS + 8 + i
            E([f"v_mov_b32 v{tmp}, v{x}", f"v_permlane32_swap_b32 v{tmp}, v{x}", f"v_add_f32 v{x}, v{x}, v{tmp}",
               f"v_mov_b32 v{tmp}, v{x}", f"v_permlane16_swap_b32 v{tmp}, v{x}", f"v_add_f32 v{x}, v{x}, v{tmp}"][st])
    for i in range(8):
        x, tmp = vL + i, vS + 8 + i
        E(f"""
        v_subrev_u32 v{tmp}, s28, v{x}
        v_cmp_le_u32 vcc, s29, v{tmp}
        v_rcp_f32 v{x}, v{x}
        s_or_b64 s[{sBad}:{sBad+1}], s[{sBad}:{sBad+1}], vcc
        """)
    for r in range(4): E(f"v_mov_b32 v{vZ0+r}, 0")
    def out_tile(i, src, rinv, check, cnt0, sreg):
        for jj in range(4):
            c = cnt0 + jj
            tb = quad(2 * (c % 4))
            ob = quad(8 + c % 8)
            for z in range(8):
                E(src(2 * jj + z // 4, z % 4, tb + z))
            pr = rinv & ~1
            sel = "op_sel_hi:[1,0]" if rinv % 2 == 0 else "op_sel:[0,1] op_sel_hi:[1,1]"
            for z in range(4):
                E(f"v_pk_mul_f32 v[{tb+2*z}:{tb+2*z+1}], v[{tb+2*z}:{tb+2*z+1}], v[{pr}:{pr+1}] {sel}")
            for z in range(4):
                E(f"v_cvt_pk_bf16_f32 v{ob+z}, v{tb+2*z}, v{tb+2*z+1}")
            E(f"v_permlane16_swap_b32 v{ob}, v{ob+2}")
            E(f"v_permlane16_swap_b32 v{ob+1}, v{ob+3}")
            E(f"buffer_store_dwordx4 {q4(ob)}, v{vO}, {srd(sO)}, s{sreg} offen offset:{jj*64}{nto_mod}")
            if check:
                E(f"{MF} {q4(vZ)}, {q4(vZ0)}, {q4(ob)}, {'0' if c == 0 else q4(vZ)}")
    for i in range(8):
        E(f"s_mov_b32 s{sTmp}, {i*4096}")
        out_tile(i, lambda j, r, d: f"v_accvgpr_read_b32 v{d}, a{32*i+4*j+r}", vL + i, True, 4 * i, sTmp)
    E(f"""
    v_cmp_u_f32 vcc, v{vZ}, v{vZ}
    s_or_b64 s[{sBad}:{sBad+1}], s[{sBad}:{sBad+1}], vcc
    """)
    stamp()
    if stamps:
        E("s_waitcnt vmcnt(0)")
        stamp()
    if stamps == 2:
        E(f"s_mov_b64 exec, 1\nv_mov_b32 v{vS}, 0")
        for k in range(nst[0]):
            E(f"v_mov_b32 v{vS+2}, s{sST+2*k}\nv_sub_u32 v{vS+3}, 0, v{vS+2}\ns_nop 4")
            E(f"buffer_atomic_umax v{vS+2}, v{vS}, {srd(sWS)}, 0 offen offset:{8*k}")
            E(f"buffer_atomic_umax v{vS+3}, v{vS}, {srd(sWS)}, 0 offen offset:{8*k+4}")
            E("s_waitcnt vmcnt(0)")
        E("s_mov_b64 exec, -1")
    elif stamps == 4:
        lk = opt.get("leak", 0); lk0 = opt.get("leak0", lk - 1)
        E(f"s_add_u32 s28, s{sST}, 10000")
        if lk:
            E(f"s_sub_u32 s29, s{sST+2*lk}, s{sST+2*lk0}\ns_add_u32 s28, s28, s29")
        S.append(I("L_spin:"))
        S.append(I(f"s_memrealtime s[30:31]", tag="smem_ok"))
        E("s_waitcnt lgkmcnt(0)\ns_sub_u32 s29, s30, s28\ns_cmp_lt_i32 s29, 0\ns_cbranch_scc1 L_spin")
    elif stamps:
        E(f"s_lshl_b32 s28, s2, 2\ns_add_u32 s28, s28, s{sW}\ns_mul_i32 s28, s28, {8*nst[0]}\nv_mov_b32 v{vS}, 0")
        for k in range(nst[0]):
            E(f"v_mov_b32 v{vS+2}, s{sST+2*k}\nv_mov_b32 v{vS+3}, s{sST+2*k+1}\ns_nop 4")
            E(f"buffer_store_dwordx2 v[{vS+2}:{vS+3}], v{vS}, {srd(sWS)}, s28 offen offset:{8*k}")
            E("s_waitcnt vmcnt(0)")
    if opt.get("twice"):
        E(f"""
        s_waitcnt vmcnt(0)
        s_barrier
        s_sub_u32 s31, s31, 1
        s_cbranch_scc1 L_again_done
        v_mbcnt_lo_u32_b32 v13, -1, 0
        v_mbcnt_hi_u32_b32 v13, -1, v13
        v_and_b32 v14, 15, v13
        v_lshrrev_b32 v15, 4, v13
        s_lshl_b32 s28, s{sW}, 7
        v_add_u32 v16, s28, v14
        v_lshlrev_b32 v16, 8, v16
        v_lshl_add_u32 v4, v15, 4, v16
        s_mov_b32 s{sOff}, 0
        s_nop 7
        s_branch L_again
        L_again_done:
        """)
    if opt.get("force_slow"):
        E(f"s_mov_b64 s[{sBad}:{sBad+1}], -1")
    E(f"""
    s_cmp_eq_u64 s[{sBad}:{sBad+1}], 0
    s_cbranch_scc1 L_end
    """)
    main = pad_hazards(insert_waits(S))

    idx = [k for k, x in enumerate(main) if x.tag == "loop"]
    assert len(idx) == NITER + 1
    segs = [[x.text for x in main[idx[k] + 1: idx[k + 1]]] for k in range(NITER)]
    for k in range(1, NITER):
        assert segs[k] == segs[0], f"loop body {k} differs"
    a = pre
    if opt.get("unroll"):
        for x in main: a(x.text)
        main = []; idx = [0]; segs = [[]]
    for x in main[:idx[0]]: a(x.text)
    if not opt.get("unroll"):
        a(f"s_mov_b32 s{sCnt}, {NITER-1}")
        if opt.get("align"): a(f".p2align {opt['align']}")
        a("L_loop:")
        for x in segs[0]: a(x)
        a(f"s_sub_u32 s{sCnt}, s{sCnt}, 1")
        a("s_cbranch_scc0 L_loop")
    for x in main[idx[-1] + 1:]: a(x.text)

    S = []
    vKd, vKd2, vM, vLs, vVd, vVr = 1, 2, 4, 6, 3, 5
    vQs = 128; vKs = 144; vVs = 176; vOs = 208
    sI, sT, sM = 28, 29, 30
    E(f"""
    s_waitcnt vmcnt(0) lgkmcnt(0)
    v_mbcnt_lo_u32_b32 v12, -1, 0
    v_mbcnt_hi_u32_b32 v12, -1, v12
    v_and_b32 v14, 15, v12
    v_lshrrev_b32 v15, 4, v12
    v_lshlrev_b32 v16, 8, v14
    v_lshl_add_u32 v{vKd}, v15, 4, v16
    v_add_u32 v{vKd2}, 4096, v{vKd}
    v_lshlrev_b32 v16, 11, v15
    v_lshl_add_u32 v{vVd}, v14, 4, v16
    s_mul_i32 s{sM}, s{sW}, {SLOT}
    s_add_u32 s{sM}, s{sM}, {SLOW_OFF}
    v_and_b32 v16, 1, v15
    v_lshrrev_b32 v17, 2, v14
    v_lshl_add_u32 v16, v16, 2, v17
    v_mul_u32_u24 v16, 1056, v16
    v_lshrrev_b32 v17, 1, v15
    v_lshl_add_u32 v16, v17, 8, v16
    v_and_b32 v17, 3, v14
    v_lshl_add_u32 v16, v17, 3, v16
    v_add_u32 v{vVr}, s{sM}, v16
    s_mov_b32 s{sI}, 0
    L_sq:
    s_lshl_b32 s{sTmp}, s{sW}, 15
    s_add_u32 s{sTmp}, s{sTmp}, s{sI}
    """)
    for s in range(4):
        E(f"buffer_load_dwordx4 {q4(vQs+4*s)}, v{vKd}, {srd(sQ)}, s{sTmp} offen offset:{s*64}")
    def slow_qk():
        for k in range(8):
            E(f"buffer_load_dwordx4 {q4(vKs+4*k)}, v{vKd if k < 4 else vKd2}, {srd(sK)}, s{sT} offen offset:{(k&3)*64}")
        E("s_waitcnt vmcnt(0)")
        for k in range(8):
            D = q4(vS + 4 * (k >> 2))
            E(f"{MF} {D}, {q4(vKs+4*k)}, {q4(vQs+4*(k&3))}, {'0' if k & 3 == 0 else D}")
    E(f"""
    v_mov_b32 v{vM}, 0xff800000
    s_mov_b32 s{sT}, 0
    L_sp1:
    """)
    slow_qk()
    for e in range(0, 8, 2):
        E(f"v_max3_f32 v{vM}, v{vM}, v{vS+e}, v{vS+e+1}")
    E(f"""
    s_add_u32 s{sT}, s{sT}, 8192
    s_cmp_lt_u32 s{sT}, 262144
    s_cbranch_scc1 L_sp1
    """)
    reduce_g(vM, vS, "v_max_f32")
    E(f"v_mov_b32 v{vLs}, 0")
    for r in range(32): E(f"v_mov_b32 v{vOs+r}, 0")
    E(f"""
    s_mov_b32 s{sT}, 0
    L_sp2:
    """)
    for b in range(8):
        E(f"s_add_u32 m0, s{sM}, {b*800}")
        E(f"buffer_load_dwordx4 v{vVd}, {srd(sV)}, s{sT} offen offset:{b*256} lds")
    slow_qk()
    for j in range(8):
        for hf in range(2):
            E(f"ds_read_b64_tr_b16 v[{vVs+4*j+2*hf}:{vVs+4*j+2*hf+1}], v{vVr} offset:{hf*512+j*32}")
    for e in range(8): E(f"v_sub_f32 v{vS+e}, v{vS+e}, v{vM}")
    for e in range(8): E(f"v_mul_f32 v{vS+e}, s{sC}, v{vS+e}")
    for e in range(8): E(f"v_exp_f32 v{vS+e}, v{vS+e}")
    for e in range(8): E(f"v_add_f32 v{vLs}, v{vLs}, v{vS+e}")
    for k in range(4): E(f"v_cvt_pk_bf16_f32 v{vP+k}, v{vS+2*k}, v{vS+2*k+1}")
    E("s_waitcnt lgkmcnt(0)")
    for j in range(8):
        D = q4(vOs + 4 * j)
        E(f"{MF} {D}, {q4(vVs+4*j)}, {q4(vP)}, {D}")
    E(f"""
    s_nop 7
    s_add_u32 s{sT}, s{sT}, 8192
    s_cmp_lt_u32 s{sT}, 262144
    s_cbranch_scc1 L_sp2
    """)
    reduce_g(vLs, vS, "v_add_f32")
    E(f"v_rcp_f32 v{vLs}, v{vLs}")
    out_tile(0, lambda j, r, d: f"v_mov_b32 v{d}, v{vOs+4*j+r}", vLs, False, 0, sI)
    E(f"""
    s_nop 7
    s_add_u32 s{sI}, s{sI}, 4096
    s_cmp_lt_u32 s{sI}, 32768
    s_cbranch_scc1 L_sq
    """)
    for x in pad_hazards(insert_waits(S, hoist=False)): a(x.text)
    a("L_end:\ns_waitcnt vmcnt(0)\ns_endpgm\nL_fin:")
    return a.text(256, 256, LDS_BYTES)

if __name__ == "__main__":
    out = sys.argv[1]
    opt = {}
    for kv in sys.argv[2:]:
        k, v = kv.split("=")
        opt[k] = int(v)
    open(out, "w").write(gen(opt))
```

```python
import sys, struct, math
from common import *
from ir import *

MF = "v_mfma_f32_16x16x32_bf16"
NT = 32
f2u = lambda x: struct.unpack("<I", struct.pack("<f", x))[0]
CSCALE = f2u(math.log2(math.e) / math.sqrt(128.0))
L_LO = f2u(2.0 ** -16); L_HI = f2u(2.0 ** 64)

vKrd, vVrd, vKdma, vVdma = 0, 1, 2, 3
vL = 4; vP = 12; vS = 20; vF = 36; vQ = 128
NQUAD = 23
def quad(k): return vF + 4 * k
def q4(b): return f"v[{b}:{b+3}]"
sQ, sK, sV, sO = 4, 8, 12, 16
sOffK, sM0, sC, sTmp, sOffV = 20, 21, 22, 24, 25
sBad = 26
sW = 3
sWS = 32
sLo, sRng = 36, 37
sST = 40
def srd(b): return f"s[{b}:{b+3}]"

DEF = dict(
    passes="0:01 1:0123 0:23 2:012345 1:45 0:45 3:01234567 2:67 1:67 0:67 4-26:01234567 27-31:012 31-27:345 27-31:67",
    items="K0 Q0 V0 Q1 T1 Q2 Q3 T2 Q4 Q5 T3 Q6 Q7",
    R=8, W=8, P=16, P2=4, keepbar=28, bar2=0, old=200, L=8, lead=12, leadV=12, xcap=1, maxcap=3, vramp=5, erate=2, nt=4, ntq=4, nto=2, ntl=2, pf=1,
    stamps=0, stampat="", leak=0, leak0=-1, force_slow=0, noperm=0, pad=1056, edelay=2, pkblk=1, verbose=0,
)

def parse_passes(s):
    P = []
    for w in s.split():
        a, qs = w.split(":")
        if "-" in a:
            x, y = map(int, a.split("-")); ts = range(x, y + 1) if x <= y else range(x, y - 1, -1)
        else:
            ts = [int(a)]
        for t in ts:
            q = [int(c) for c in qs]
            if P and P[-1][0] == t: P[-1][1].extend(q)
            else: P.append([t, q])
    seen = set((t, i) for t, q in P for i in q)
    assert len(seen) == 256 and sum(len(q) for t, q in P) == 256
    return P

def gen(o):
    opt = dict(DEF); opt.update(o)
    cm = lambda k: "".join(m for b, m in ((1, " sc0"), (2, " sc1"), (4, " nt")) if opt[k] & b)
    nt_mod = cm("nt"); ntq_mod = cm("ntq")
    R = opt["R"]; PAD = opt["pad"]; SLOT = 8 * PAD; KV_OFF = R * SLOT
    LDS_BYTES = 2 * KV_OFF
    stamps = opt["stamps"]
    TIMEOP = "s_memtime" if stamps == 1 else "s_memrealtime"
    nst = [0]
    def stamp_i():
        k = nst[0]; nst[0] += 1
        return I(f"{TIMEOP} s[{sST+2*k}:{sST+2*k+1}]", tag="smem_ok")
    S = []
    def E(text, **kw):
        for l in text.split("\n"):
            l = l.strip()
            if l: S.append(I(l, **kw))
    slot_of = lambda t: t % R
    passes = parse_passes(opt["passes"])
    units = [(t, i) for t, q in passes for i in q]
    NU = len(units)
    firstu = {}; lastu = {}
    for n, (t, i) in enumerate(units):
        firstu.setdefault(i, n); lastu[i] = n

    items = opt["items"].split()
    have = set(items)
    for t in range(NT):
        if f"T{t}" not in have and f"K{t}" not in have: items.append(f"T{t}")
    qlast = [int(x[1:]) for x in items if x[0] == "Q"][-1]
    vQoff = vL + qlast
    vm = []
    for it in items:
        x = int(it[1:])
        if it[0] == "Q": vm += [dict(kind="Q", x=x, k=k) for k in range(4)]
        if it[0] in "TK": vm += [dict(kind="K", x=x, k=k) for k in range(2)]
        if it[0] in "TV": vm += [dict(kind="V", x=x, k=k) for k in range(2)]
    for v, d in enumerate(vm): d["v"] = v
    vidx = {(d["kind"], d["x"], d["k"]): d["v"] for d in vm}
    def vm_instr(d):
        kind, x, k = d["kind"], d["x"], d["k"]
        if kind == "Q":
            st = [I(f"s_mov_b32 s{sTmp}, {x*4096}")] if k == 0 else []
            return st, I(f"buffer_load_dwordx4 {q4(vQ+16*x+4*k)}, v{vQoff}, {srd(sQ)}, s{sTmp} offen offset:{k*64}{ntq_mod}")
        goff = ([0, 2048] if kind == "K" else [0, 1024])[k]
        base = slot_of(x) * SLOT + (KV_OFF if kind == "V" else 0) + k * 4 * PAD - goff
        so = sOffK if kind == "K" else sOffV
        st = [I(f"s_add_u32 m0, s{sM0}, {base}")]
        if k == 0: st.append(I(f"s_mov_b32 s{so}, {x*8192}"))
        off = f" offset:{goff}" if goff else ""
        return st, I(f"buffer_load_dwordx4 v{vKdma if kind == 'K' else vVdma}, {srd(sK if kind == 'K' else sV)}, s{so} offen{off}{nt_mod} lds",
                     tok_w=f"tile{x}{kind}")

    pre = Asm()
    pre(f"""
    s_cmp_ge_u32 s2, 256
    s_cbranch_scc1 L_end
    s_load_dwordx4 s[4:7], s[0:1], 0
    s_load_dwordx4 s[12:15], s[0:1], 16
    """)
    if stamps:
        pre(f"s_load_dwordx2 s[{sWS}:{sWS+1}], s[0:1], 40")
        pre(stamp_i().text)
    pre(f"""
    v_lshrrev_b32 v12, 6, v0
    v_and_b32 v13, 63, v0
    v_readfirstlane_b32 s{sW}, v12
    v_and_b32 v14, 15, v13
    v_lshrrev_b32 v15, 4, v13
    s_lshl_b32 s28, s2, 17
    s_lshl_b32 s29, s2, 18
    s_mov_b32 s{sC}, {hex(CSCALE)}
    s_mov_b32 s{sC+1}, {hex(CSCALE)}
    s_mul_i32 s{sM0}, s{sW}, {PAD}
    s_mov_b64 s[{sBad}:{sBad+1}], 0
    s_mov_b32 s{sLo}, {hex(L_LO)}
    s_mov_b32 s{sRng}, {hex(L_HI - L_LO)}
    ; K dma voffset: (16*(sub>>1)+4*(sub&1)+w)*256 + c*16
    v_lshrrev_b32 v16, 1, v15
    v_lshlrev_b32 v16, 4, v16
    v_and_b32 v17, 1, v15
    v_lshlrev_b32 v17, 2, v17
    v_add3_u32 v16, v16, v17, v12
    v_lshlrev_b32 v16, 8, v16
    v_lshl_add_u32 v{vKdma}, v14, 4, v16
    ; V dma voffset: (w+8*sub)*256 + c*16
    v_lshl_add_u32 v16, v15, 3, v12
    v_lshlrev_b32 v16, 8, v16
    v_lshl_add_u32 v{vVdma}, v14, 4, v16
    v_lshl_add_u32 v16, v12, 7, v14
    v_lshlrev_b32 v16, 8, v16
    v_lshl_add_u32 v{vQoff}, v15, 4, v16
    """)
    if opt["pf"]:
        pre(f"""
        s_getpc_b64 s[30:31]
        L_pc:
        s_lshr_b32 s38, s2, 3
        s_lshl_b32 s38, s38, 12
        v_lshl_add_u32 v18, v0, 4, s38
        v_min_u32 v18, L_fin-L_pc-16, v18
        v_mov_b32 v19, s31
        v_add_co_u32 v18, vcc, s30, v18
        v_addc_co_u32 v19, vcc, 0, v19, vcc
        """)
        if opt["pf"] == 1: pre(f"global_load_dwordx4 {q4(vQ+16*qlast+12)}, v[18:19], off")
    pre(f"""
    s_waitcnt lgkmcnt(0)
    s_add_u32 s8, s6, s29
    s_addc_u32 s9, s7, 0
    s_mov_b32 s10, 262144
    s_mov_b32 s11, 0x00020000
    s_add_u32 s16, s14, s28
    s_addc_u32 s17, s15, 0
    s_mov_b32 s18, 131072
    s_mov_b32 s19, 0x00020000
    s_add_u32 s12, s12, s29
    s_addc_u32 s13, s13, 0
    s_mov_b32 s14, 262144
    s_mov_b32 s15, 0x00020000
    s_add_u32 s4, s4, s28
    s_addc_u32 s5, s5, 0
    s_mov_b32 s6, 131072
    s_mov_b32 s7, 0x00020000
    """)
    if stamps:
        pre(f"s_mov_b32 s{sWS+2}, 268435456\ns_mov_b32 s{sWS+3}, 0x00020000")
    W = opt["W"]
    vnext = [0]
    def issue_now(lst, upto):
        while vnext[0] <= upto and vnext[0] < len(vm):
            st, ld = vm_instr(vm[vnext[0]]); lst += st; lst.append(ld); vm[vnext[0]]["G"] = curG[0]; vnext[0] += 1
    curG = [-64]
    issue_now(S, W - 1)
    if opt["pf"] == 2:
        x = I(f"buffer_load_dwordx4 {q4(vQ+16*qlast+12)}, v[18:19], off"); x.text = f"global_load_dwordx4 {q4(vQ+16*qlast+12)}, v[18:19], off"
        S.append(x)
    vchunk = "v_lshlrev_b32 v17, 4, v17" if opt["noperm"] else "v_lshlrev_b32 v17, 3, v17"
    E(f"""
    v_and_b32 v16, 3, v14
    v_lshrrev_b32 v17, 3, v14
    v_lshl_add_u32 v16, v17, 2, v16
    v_mul_u32_u24 v16, {PAD}, v16
    v_lshrrev_b32 v17, 2, v14
    v_and_b32 v17, 1, v17
    v_lshl_add_u32 v16, v17, 8, v16
    v_lshl_add_u32 v{vKrd}, v15, 4, v16
    v_and_b32 v16, 1, v15
    v_lshrrev_b32 v17, 2, v14
    v_lshl_add_u32 v16, v16, 2, v17
    v_mul_u32_u24 v16, {PAD}, v16
    v_lshrrev_b32 v17, 1, v15
    v_lshl_add_u32 v16, v17, 8, v16
    v_and_b32 v17, 3, v14
    {vchunk}
    v_add3_u32 v{vVrd}, v16, v17, s{sTmp+0}
    """.replace(f"v_add3_u32 v{vVrd}, v16, v17, s{sTmp+0}", f"v_add_u32 v16, v16, v17\nv_add_u32 v{vVrd}, {KV_OFF}, v16"))
    vjoff = (lambda j: (j & 1) * 8 + (j >> 1) * 64) if opt["noperm"] else (lambda j: j * 32)

    mfx = {}
    head = {}; mem = {}; val = {}; tail = {}; pre_slot = {}
    cost = {}
    def put(d, G, x): d.setdefault(G, []).append(x)
    def putv(G, x, c=4): put(val, G, x); cost[G] = cost.get(G, 0) + c
    frags = []
    fr = {}
    n0 = 0
    pinfo = []
    for p, (t, q) in enumerate(passes):
        n1 = n0 + len(q) - 1
        pinfo.append((n0, n1))
        for k in range(8):
            f = dict(p=p, kind="K", idx=k, t=t, first=16 * (n0 - 1) + k, last=16 * (n1 - 1) + k, quad=None); frags.append(f); fr[(p, "K", k)] = f
            f = dict(p=p, kind="V", idx=k, t=t, first=16 * (n0 + 1) + 8 + k, last=16 * (n1 + 1) + 8 + k, quad=None); frags.append(f); fr[(p, "V", k)] = f
        n0 = n1 + 1
    upass = [p for p, (t, q) in enumerate(passes) for i in q]
    for n, (t, i) in enumerate(units):
        b = n & 1; p = upass[n]
        for k in range(8):
            T, s = k >> 2, k & 3
            D = q4(vS + 8 * b + 4 * T)
            mfx[16 * (n - 1) + k] = (lambda D=D, p=p, k=k, i=i, s=s: f"{MF} {D}, {q4(quad(fr[(p,'K',k)]['quad']))}, {q4(vQ+16*i+4*s)}, {'0' if s == 0 else D}")
        for j in range(8):
            A = f"a[{32*i+4*j}:{32*i+4*j+3}]"
            mfx[16 * (n + 1) + 8 + j] = (lambda A=A, p=p, j=j, b=b, z=(n == firstu[i]): f"{MF} {A}, {q4(quad(fr[(p,'V',j)]['quad']))}, {q4(vP+4*b)}, {'0' if z else A}")
        for e in range(8):
            x = vS + 8 * b + e
            putv(16 * n + 2 * e, I(f"v_exp_f32 v{x}, v{x}"), 8)
            if n == firstu[i] and e == 0: putv(16 * n + 2 * e + 3, I(f"v_mov_b32 v{vL+i}, v{x}"))
            else: putv(16 * n + 2 * e + 3, I(f"v_add_f32 v{vL+i}, v{vL+i}, v{x}"))
        for k in range(4):
            x = vS + 8 * b + 2 * k
            putv(16 * n + 4 * k + 7, I(f"v_cvt_pk_bf16_f32 v{vP+4*b+k}, v{x}, v{x+1}"))
    GEND = 16 * (NU + 1)
    loads = []
    L = opt["L"]
    PIN = {("V", 6, 0): (8, 1), ("V", 6, 1): (8, 5), ("V", 1, 0): (8, 9), ("V", 1, 1): (8, 13), ("V", 7, 0): (9, 1), ("V", 7, 1): (9, 5),
           ("K", 0, 0): (2, 1), ("K", 2, 0): (2, 9), ("K", 3, 0): (3, 9), ("K", 4, 0): (4, 9),
           ("V", 0, 0): (2, 13), ("V", 0, 1): (3, 1), ("V", 2, 0): (3, 13), ("V", 2, 1): (4, 1), ("V", 3, 0): (4, 13), ("V", 3, 1): (5, 1),
           ("K", 1, 0): (6, 1), ("K", 5, 0): (6, 5), ("K", 6, 0): (6, 9), ("K", 7, 0): (6, 13),
           ("V", 4, 0): (7, 1), ("V", 4, 1): (7, 5), ("V", 5, 0): (7, 9), ("V", 5, 1): (7, 13)}
    firstpass = {}
    for p, (t, q) in enumerate(passes): firstpass.setdefault(t, p)
    vramp = opt["vramp"]
    def is_pinned(p):
        return p > 0 and len(passes[p - 1][1]) >= 8 and (passes[p][0] > vramp or firstpass[passes[p][0]] != p)
    for f in frags:
        for h in range(1 if f["kind"] == "K" else 2):
            ld = dict(f=f, h=h, dl=f["first"] - L, pin=None, G=None)
            if is_pinned(f["p"]):
                sl, g = PIN[(f["kind"], f["idx"], h)]
                ld["pin"] = 16 * (pinfo[f["p"]][0] - 8 + sl) + g
            loads.append(ld)
    loads.sort(key=lambda x: (x["dl"], x["h"]))
    pinned_at = {}
    for ld in loads:
        if ld["pin"] is not None: pinned_at.setdefault(ld["pin"], []).append(ld)
    bar = {}
    avail = {}
    prevG = -10**9
    for t in range(NT):
        p = firstpass[t]
        fk = fr[(p, "K", 0)]["first"]; fv = fr[(p, "V", 0)]["first"]
        if p == 0: gk = -32
        elif is_pinned(p): gk = 16 * (pinfo[p][0] - 8 + 2)
        elif t > vramp: gk = max(fk - opt.get("leadd", 40), prevG + 8)
        else: gk = fk - opt["lead"]
        if f"K{t}" in have:
            gv = fv - opt["leadV"]
            bar.setdefault(gk, []).append((t, "K")); bar.setdefault(gv, []).append((t, "V"))
            avail[(t, "K")] = gk + 1; avail[(t, "V")] = gv + 1
        else:
            bar.setdefault(gk, []).extend([(t, "K"), (t, "V")])
            avail[(t, "K")] = avail[(t, "V")] = gk + 1
        prevG = gk
    lastbar = max(bar)
    def ds_instr(ld):
        f = ld["f"]; t = f["t"]; b = quad(f["quad"])
        if f["kind"] == "K":
            T, s = f["idx"] >> 2, f["idx"] & 3
            return I(f"ds_read_b128 {q4(b)}, v{vKrd} offset:{slot_of(t)*SLOT + T*512 + s*64}", tok_w=f"rd{t}K")
        b += 2 * ld["h"]
        return I(f"ds_read_b64_tr_b16 v[{b}:{b+1}], v{vVrd} offset:{slot_of(t)*SLOT + ld['h']*512 + vjoff(f['idx'])}", tok_w=f"rd{t}V")
    remaining = {}
    for ld in loads: remaining[(ld["f"]["t"], ld["f"]["kind"])] = remaining.get((ld["f"]["t"], ld["f"]["kind"]), 0) + 1
    lastrd = {}
    freed = {}
    def war_ok(d, G):
        if d["kind"] == "Q": return True
        prev = [t for t in range(d["x"]) if slot_of(t) == slot_of(d["x"])]
        return all((t, d["kind"]) in freed and freed[(t, d["kind"])] <= G for t in prev)
    def isfree(G):
        if G not in mfx: return True
        return cost.get(G, 0) + 4 * len(mem.get(G, [])) + 4 * len([x for x in pinned_at.get(G, []) if x["G"] is None]) <= 4
    freeq = list(range(NQUAD))
    covered = set()
    live = []
    pending = [ld for ld in loads]
    lastvmG = -10**9
    order = sorted(range(8), key=lambda i: lastu[i])
    tA, tB = order[0], order[1]
    tA, tB = min(tA, tB), max(tA, tB)
    TB = [vQ + 16 * tA, vQ + 16 * tA + 8]
    OB = [vQ + 16 * tB, vQ + 16 * tB + 4]
    vZ = vQ + 16 * tB + 8
    vO = vQ + 16 * tB + 12; vT = vQ + 16 * tB + 13; vT2 = vQ + 16 * tB + 14
    tempfree = 16 * (max(lastu[tA], lastu[tB]) - 1) + 8
    def epi(i, first, last, blk):
        n = lastu[i]; out = []
        g0 = max(16 * n + 18, tempfree)
        nto_mod = cm("ntl" if blk else "nto")
        if first:
            for z in f"""v_mbcnt_lo_u32_b32 v{vT}, -1, 0
            v_mbcnt_hi_u32_b32 v{vT}, -1, v{vT}
            v_and_b32 v{vO}, 15, v{vT}
            v_lshrrev_b32 v{vT}, 4, v{vT}
            s_lshl_b32 s28, s{sW}, 7
            v_add_u32 v{vO}, s28, v{vO}
            v_lshlrev_b32 v{vO}, 8, v{vO}""".split("\n"): out.append((tempfree, I(z.strip()), 4))
            if opt["noperm"]:
                out.append((tempfree, I(f"v_lshl_add_u32 v{vO}, v{vT}, 4, v{vO}"), 4))
            else:
                for z in f"""v_and_b32 v{vT2}, 1, v{vT}
                v_lshl_add_u32 v{vO}, v{vT2}, 5, v{vO}
                v_lshrrev_b32 v{vT}, 1, v{vT}
                v_lshl_add_u32 v{vO}, v{vT}, 4, v{vO}""".split("\n"): out.append((tempfree, I(z.strip()), 4))
        x = vL + i
        for z in [f"v_mov_b32 v{vT}, v{x}", f"v_permlane32_swap_b32 v{vT}, v{x}", f"v_add_f32 v{x}, v{x}, v{vT}",
                  f"v_mov_b32 v{vT}, v{x}", f"v_permlane16_swap_b32 v{vT}, v{x}", f"v_add_f32 v{x}, v{x}, v{vT}",
                  f"v_subrev_u32 v{vT}, s{sLo}, v{x}", f"v_cmp_le_u32 vcc, s{sRng}, v{vT}", f"v_rcp_f32 v{x}, v{x}",
                  f"s_or_b64 s[{sBad}:{sBad+1}], s[{sBad}:{sBad+1}], vcc", f"s_mov_b32 s{sTmp}, {i*4096}"]:
            out.append((g0, I(z), 0 if z[0] == "s" else 8 if ("perm" in z or "rcp" in z) else 4))
        for jj in range(4):
            tb = TB[jj & 1]; ob = OB[jj & 1]
            g1 = 16 * (n + 1) + 8 + 2 * jj + 1 + opt["edelay"]
            for z in range(8):
                out.append((g1, I(f"v_accvgpr_read_b32 v{tb+z}, a{32*i+8*jj+z}"), 4))
            if blk and opt["pkblk"]:
                pr = x & ~1
                sel = "op_sel_hi:[1,0]" if x % 2 == 0 else "op_sel:[0,1] op_sel_hi:[1,1]"
                for z in range(4):
                    out.append((g1, I(f"v_pk_mul_f32 v[{tb+2*z}:{tb+2*z+1}], v[{tb+2*z}:{tb+2*z+1}], v[{pr}:{pr+1}] {sel}"), 4))
            else:
                for z in range(8): out.append((g1, I(f"v_mul_f32 v{tb+z}, v{tb+z}, v{x}"), 4))
            for z in range(4):
                out.append((g1, I(f"v_cvt_pk_bf16_f32 v{ob+z}, v{tb+2*z}, v{tb+2*z+1}"), 4))
            if not opt["noperm"]:
                out.append((g1, I(f"v_permlane16_swap_b32 v{ob}, v{ob+2}"), 8))
                out.append((g1, I(f"v_permlane16_swap_b32 v{ob+1}, v{ob+3}"), 8))
            out.append((g1, I(f"buffer_store_dwordx4 {q4(ob)}, v{vO}, {srd(sO)}, s{sTmp} offen offset:{jj*64}{nto_mod}"), 4))
            if jj & 1:
                out.append((g1, I(f"{MF} {q4(vZ)}, {q4(OB[0])}, {q4(OB[1])}, {'0' if first and jj == 1 else q4(vZ)}"), 16))
        return out
    nblk = opt.get("nblk", len(passes[-1][1]))
    estream = []
    for r, i in enumerate(order): estream += epi(i, r == 0, r == 7, r >= 8 - nblk)
    ecred = 0.0
    stats = dict(forced=0, late=0, vmextra=0)
    qblock_at = {firstu[i] - 1: i for i in range(8)}
    stampat = set(int(x) for x in str(opt["stampat"]).split(",") if x != "")

    for G in range(-48, GEND):
        curG[0] = G
        n, g = G >> 4, G & 15
        if g == 0 and n in qblock_at:
            i = qblock_at[n]; blk = []
            tt = vS + 8 * ((n + 1) & 1)
            for s in range(4):
                for r in range(0, 4, 2):
                    x = vQ + 16 * i + 4 * s + r; t2 = tt + r
                    blk += [I(z) for z in [f"v_lshlrev_b32 v{t2}, 16, v{x}"]]
                    if r == 0 and vidx[("Q", i, s)] + W < 4 * (8 + vramp + 1):
                        assert vnext[0] > vidx[("Q", i, s)]
                        b4 = vnext[0]
                        issue_now(blk, vidx[("Q", i, s)] + W)
                        if vnext[0] > b4: lastvmG = G
                    blk += [I(z) for z in [f"v_lshlrev_b32 v{t2+1}, 16, v{x+1}", f"v_and_b32 v{x}, 0xffff0000, v{x}", f"v_and_b32 v{x+1}, 0xffff0000, v{x+1}",
                            f"v_pk_mul_f32 v[{t2}:{t2+1}], v[{t2}:{t2+1}], s[{sC}:{sC+1}]", f"v_pk_mul_f32 v[{x}:{x+1}], v[{x}:{x+1}], s[{sC}:{sC+1}]",
                            f"v_cvt_pk_bf16_f32 v{x}, v{t2}, v{x}", f"v_cvt_pk_bf16_f32 v{x+1}, v{t2+1}, v{x+1}"]]
            pre_slot[n] = blk
        if g == 0 and n in stampat and stamps: put(head, G, stamp_i())
        for f in [f for f in live if f["last"] <= G]:
            live.remove(f); freeq.append(f["quad"])
        if G in bar and all(key in covered for key in bar[G]):
            t0 = bar[G][0][0]
            if t0 <= vramp or (vnext[0] == len(vm) and t0 != opt["keepbar"]) or (opt["bar2"] and t0 % 2 == 1 and t0 != opt["keepbar"]):
                del bar[G]
        if G in bar:
            cov = max(vidx[(k, t, 1)] for t, k in bar[G])
            assert vnext[0] > cov, (G, bar[G], vnext[0], cov)
            for d in vm[:vnext[0]]:
                key = (d["x"], d["kind"])
                if d["kind"] != "Q" and d["k"] == 1 and key not in covered and (d["v"] <= cov or (d["x"] > vramp and d["G"] <= G - opt["old"])):
                    covered.add(key); avail[key] = min(avail[key], G + 1)
                    if key not in bar[G]: bar[G].append(key)
            toks = [f"tile{t}{k}" for t, k in bar[G]]
            for key, r in remaining.items():
                if r == 0 and key not in freed and lastrd[key] <= G - 6:
                    freed[key] = G; toks.append(f"rd{key[0]}{key[1]}")
            put(head, G, I("s_barrier", tok_r=toks))
            if stamps and opt.get("stampbar") and bar[G][0][0] <= opt["stampbar"]: put(head, G, stamp_i())
            lim = min(cov + W, 4 * (8 + vramp + 1) - 1)
            while vnext[0] <= lim and war_ok(vm[vnext[0]], G):
                issue_now(head[G], vnext[0]); lastvmG = G
        def do_issue(ld):
            f = ld["f"]
            if f["quad"] is None:
                f["quad"] = freeq.pop(0); live.append(f)
            ld["G"] = G; pending.remove(ld)
            put(mem, G, ds_instr(ld))
            key = (f["t"], f["kind"]); remaining[key] -= 1; lastrd[key] = G
            if G > ld["dl"] and ld["pin"] is None: stats["late"] += 1
        for ld in pinned_at.get(G, []):
            assert ld["f"]["quad"] is not None or freeq, f"no quad for pinned load at {G}"
            assert avail[(ld["f"]["t"], ld["f"]["kind"])] <= G
            do_issue(ld)
        def candidate():
            blockp = 10**9
            for ld in pending[:48]:
                f = ld["f"]
                if ld["pin"] is not None: return None
                if f["p"] >= blockp: continue
                if avail[(f["t"], f["kind"])] > G:
                    blockp = min(blockp, f["p"]); continue
                if f["quad"] is None and not freeq: return None
                return ld
            return None
        if G not in bar:
            cnt = 0
            while True:
                c = candidate()
                if c is None: break
                if isfree(G):
                    do_issue(c); cnt += 1; continue
                if len(mem.get(G, [])) >= opt["maxcap"]: break
                need = False; k = 0; cap = 0; gg = G
                for ld in pending[:40]:
                    if ld["pin"] is not None: break
                    k += 1
                    while gg < ld["dl"]:
                        gg += 1
                        cap += (1 if isfree(gg) else 0) + opt["xcap"]
                    if k > cap: need = True; break
                if not need: break
                do_issue(c); stats["forced"] += 1
        if vnext[0] < len(vm) and G not in bar and G in mfx:
            d = vm[vnext[0]]
            ramp = d["v"] < 4 * (8 + vramp + 1)
            PP = opt["P"] if ramp else opt["P2"]
            if G >= lastvmG + PP and war_ok(d, G - 1) and (isfree(G) or (ramp and G >= lastvmG + PP + 3)):
                if not isfree(G): stats["vmextra"] += 1
                st, ld = vm_instr(d)
                prevdma = any(x.kind in ("dma", "vld") for x in mem.get(G - 1, []))
                for z in st: put(tail if prevdma else head, G - 1, z)
                put(mem, G, ld); d["G"] = G; vnext[0] += 1; lastvmG = G
        if estream and G in mfx:
            if estream[0][0] <= G:
                ecred += opt["erate"] * 4
                if isfree(G): ecred += 4
            while estream and estream[0][0] <= G and ecred >= 1:
                g0, x, c = estream.pop(0)
                if x.kind == "vst" and val.get(G):
                    put(mem, G + 1, x)
                    ecred -= c; break
                put(val, G, x); ecred -= c
    assert not pending and vnext[0] == len(vm)
    if opt["verbose"]:
        print("stats", stats, "passes", len(passes), file=sys.stderr)
        print("vm gaps", [(d["kind"] + str(d["x"]), d["G"]) for d in vm if d["k"] == 0], file=sys.stderr)
        print("bars", sorted(bar.items()), file=sys.stderr)
        print("estream left", len(estream), file=sys.stderr)
    for n in range(-3, NU + 2):
        for x in pre_slot.get(n, []): S.append(x)
        for g in range(16):
            G = 16 * n + g
            if G in mfx: S.append(I(mfx[G]()))
            for d in (head, mem, val, tail):
                for x in d.get(G, []): S.append(x)
    if stamps: S.append(stamp_i())
    for g0, x, c in estream: S.append(x)
    for r in range(4):
        E(f"""
        v_cmp_class_f32 vcc, v{vZ+r}, v{vT2}
        s_or_b64 s[{sBad}:{sBad+1}], s[{sBad}:{sBad+1}], vcc
        """ if r else f"""
        v_mov_b32 v{vT2}, 0x207
        v_cmp_class_f32 vcc, v{vZ+r}, v{vT2}
        s_or_b64 s[{sBad}:{sBad+1}], s[{sBad}:{sBad+1}], vcc
        """)
    if stamps:
        S.append(stamp_i())
        E("s_waitcnt vmcnt(0)")
        S.append(stamp_i())
        E("s_waitcnt lgkmcnt(0)")
    if stamps == 4:
        lk = opt["leak"]; lk0 = opt["leak0"] if opt["leak0"] >= 0 else lk - 1
        E(f"s_add_u32 s28, s{sST}, 10000")
        if lk:
            E(f"s_sub_u32 s29, s{sST+2*lk}, s{sST+2*lk0}\ns_add_u32 s28, s28, s29")
        S.append(I("L_spin:"))
        S.append(I(f"s_memrealtime s[30:31]", tag="smem_ok"))
        E("s_waitcnt lgkmcnt(0)\ns_sub_u32 s29, s30, s28\ns_cmp_lt_i32 s29, 0\ns_cbranch_scc1 L_spin")
    elif stamps:
        E(f"s_lshl_b32 s28, s2, 2\ns_add_u32 s28, s28, s{sW}\ns_mul_i32 s28, s28, {8*nst[0]}\nv_mov_b32 v{vS}, 0")
        for k in range(nst[0]):
            E(f"v_mov_b32 v{vS+2}, s{sST+2*k}\nv_mov_b32 v{vS+3}, s{sST+2*k+1}\ns_nop 4")
            E(f"buffer_store_dwordx2 v[{vS+2}:{vS+3}], v{vS}, {srd(sWS)}, s28 offen offset:{8*k}")
            E("s_waitcnt vmcnt(0)")
        print("nstamps", nst[0], file=sys.stderr)
    if opt["force_slow"]:
        E(f"s_mov_b64 s[{sBad}:{sBad+1}], -1")
    lastocc = {}
    for t in range(NT):
        for k in "KV": lastocc[(slot_of(t), k)] = (t, k)
    dead = [s * SLOT + (KV_OFF if k == "V" else 0) for (s, k), key in sorted(lastocc.items()) if key in freed]
    if len(dead) < 4:
        E("s_waitcnt lgkmcnt(0)\ns_barrier"); dead = [0, SLOT, 2 * SLOT, 3 * SLOT]
    E(f"""
    s_cmp_eq_u64 s[{sBad}:{sBad+1}], 0
    s_cbranch_scc1 L_end
    """)
    rep = []
    main = pad_hazards(insert_waits(S), rep)
    if opt["verbose"]:
        print("nops", len(rep), "dead", dead, "waits", sum(1 for x in main if x.kind == "wait"), file=sys.stderr)
    a = pre
    for x in main: a(x.text)

    S = []
    vKd, vKd2, vM, vLs, vVd, vVr, vOa = 1, 2, 4, 6, 3, 5, 0
    vQs = 128; vKs = 144; vVs = 176; vOs = 208
    sI, sT, sM = 28, 29, 30
    E(f"""
    s_waitcnt vmcnt(0) lgkmcnt(0)
    v_mbcnt_lo_u32_b32 v12, -1, 0
    v_mbcnt_hi_u32_b32 v12, -1, v12
    v_and_b32 v14, 15, v12
    v_lshrrev_b32 v15, 4, v12
    v_lshlrev_b32 v16, 8, v14
    v_lshl_add_u32 v{vKd}, v15, 4, v16
    v_add_u32 v{vKd2}, 4096, v{vKd}
    v_lshlrev_b32 v16, 11, v15
    v_lshl_add_u32 v{vVd}, v14, 4, v16
    s_mov_b32 s{sM}, {dead[0]}
    s_cmp_eq_u32 s{sW}, 1
    s_cselect_b32 s{sM}, {dead[1]}, s{sM}
    s_cmp_eq_u32 s{sW}, 2
    s_cselect_b32 s{sM}, {dead[2]}, s{sM}
    s_cmp_eq_u32 s{sW}, 3
    s_cselect_b32 s{sM}, {dead[3]}, s{sM}
    v_and_b32 v16, 1, v15
    v_lshrrev_b32 v17, 2, v14
    v_lshl_add_u32 v16, v16, 2, v17
    v_mul_u32_u24 v16, 1056, v16
    v_lshrrev_b32 v17, 1, v15
    v_lshl_add_u32 v16, v17, 8, v16
    v_and_b32 v17, 3, v14
    v_lshl_add_u32 v16, v17, 4, v16
    v_add_u32 v{vVr}, s{sM}, v16
    s_mov_b32 s{sI}, 0
    L_sq:
    s_lshl_b32 s{sTmp}, s{sW}, 15
    s_add_u32 s{sTmp}, s{sTmp}, s{sI}
    """)
    for s in range(4):
        E(f"buffer_load_dwordx4 {q4(vQs+4*s)}, v{vKd}, {srd(sQ)}, s{sTmp} offen offset:{s*64}")
    def slow_qk():
        for k in range(8):
            E(f"buffer_load_dwordx4 {q4(vKs+4*k)}, v{vKd if k < 4 else vKd2}, {srd(sK)}, s{sT} offen offset:{(k&3)*64}")
        E("s_waitcnt vmcnt(0)")
        for k in range(8):
            D = q4(vS + 4 * (k >> 2))
            E(f"{MF} {D}, {q4(vKs+4*k)}, {q4(vQs+4*(k&3))}, {'0' if k & 3 == 0 else D}")
    def reduce_g(x, tmp, op):
        E(f"""
        v_mov_b32 v{tmp}, v{x}
        v_permlane32_swap_b32 v{tmp}, v{x}
        {op} v{x}, v{x}, v{tmp}
        v_mov_b32 v{tmp}, v{x}
        v_permlane16_swap_b32 v{tmp}, v{x}
        {op} v{x}, v{x}, v{tmp}
        """)
    E(f"""
    v_mov_b32 v{vM}, 0xff800000
    s_mov_b32 s{sT}, 0
    L_sp1:
    """)
    slow_qk()
    for e in range(0, 8, 2):
        E(f"v_max3_f32 v{vM}, v{vM}, v{vS+e}, v{vS+e+1}")
    E(f"""
    s_add_u32 s{sT}, s{sT}, 8192
    s_cmp_lt_u32 s{sT}, 262144
    s_cbranch_scc1 L_sp1
    """)
    reduce_g(vM, vS, "v_max_f32")
    E(f"v_mov_b32 v{vLs}, 0")
    for r in range(32): E(f"v_mov_b32 v{vOs+r}, 0")
    E(f"""
    s_mov_b32 s{sT}, 0
    L_sp2:
    """)
    for b in range(8):
        E(f"s_add_u32 m0, s{sM}, {b*800}")
        E(f"buffer_load_dwordx4 v{vVd}, {srd(sV)}, s{sT} offen offset:{b*256} lds")
    slow_qk()
    for j in range(8):
        for hf in range(2):
            E(f"ds_read_b64_tr_b16 v[{vVs+4*j+2*hf}:{vVs+4*j+2*hf+1}], v{vVr} offset:{hf*512+(j&1)*8+(j>>1)*64}")
    for e in range(8): E(f"v_sub_f32 v{vS+e}, v{vS+e}, v{vM}")
    for e in range(8): E(f"v_mul_f32 v{vS+e}, s{sC}, v{vS+e}")
    for e in range(8): E(f"v_exp_f32 v{vS+e}, v{vS+e}")
    for e in range(8): E(f"v_add_f32 v{vLs}, v{vLs}, v{vS+e}")
    for k in range(4): E(f"v_cvt_pk_bf16_f32 v{vP+k}, v{vS+2*k}, v{vS+2*k+1}")
    E("s_waitcnt lgkmcnt(0)")
    for j in range(8):
        D = q4(vOs + 4 * j)
        E(f"{MF} {D}, {q4(vVs+4*j)}, {q4(vP)}, {D}")
    E(f"""
    s_nop 7
    s_add_u32 s{sT}, s{sT}, 8192
    s_cmp_lt_u32 s{sT}, 262144
    s_cbranch_scc1 L_sp2
    """)
    reduce_g(vLs, vS, "v_add_f32")
    E(f"v_rcp_f32 v{vLs}, v{vLs}")
    for r in range(32): E(f"v_mul_f32 v{vOs+r}, v{vOs+r}, v{vLs}")
    for jj in range(4):
        for z in range(4):
            E(f"v_cvt_pk_bf16_f32 v{vKs+4*jj+z}, v{vOs+8*jj+2*z}, v{vOs+8*jj+2*z+1}")
        E(f"buffer_store_dwordx4 {q4(vKs+4*jj)}, v{vKd}, {srd(sO)}, s{sTmp} offen offset:{jj*64}")
    E(f"""
    s_waitcnt vmcnt(0)
    s_add_u32 s{sI}, s{sI}, 4096
    s_cmp_lt_u32 s{sI}, 32768
    s_cbranch_scc1 L_sq
    """)
    for x in pad_hazards(insert_waits(S, hoist=False)): a(x.text)
    a("L_end:\ns_waitcnt vmcnt(0)\ns_endpgm\nL_fin:")
    return a.text(256, 256, LDS_BYTES)

if __name__ == "__main__":
    out = sys.argv[1]
    opt = {}
    for kv in sys.argv[2:]:
        k, v = kv.split("=", 1)
        try: opt[k] = int(v)
        except ValueError:
            try: opt[k] = float(v)
            except ValueError: opt[k] = v
    open(out, "w").write(gen(opt))
```
